```python
import torch

def _softmax(x, axis=-1):
    return torch.softmax(x, dim=axis)
def _gelu(x):
    return torch.nn.functional.gelu(x, approximate="tanh")
def _silu(x):
    return torch.nn.functional.silu(x)
def _sigmoid(x):
    return torch.sigmoid(x)
def _layernorm(x, axis=-1, eps=1e-5):
    m = x.mean(dim=axis, keepdim=True)
    v = x.var(dim=axis, keepdim=True, unbiased=False)
    return (x - m) / torch.sqrt(v + eps)
def _scatter_add(tgt, idx, src, axis=0):
    return tgt.clone().index_add_(axis, idx, src)
def _segment_sum(src, seg, n):
    out = torch.zeros((n,) + src.shape[1:], dtype=src.dtype)
    return out.index_add_(0, seg, src)
def _pad(x, pw):
    flat = tuple(v for pair in reversed(pw) for v in pair)
    return torch.nn.functional.pad(x, flat)

kernel_name = 'standalone__swiglu_ffn__prompt'

def setup_inputs():

    _w = (lambda a: (lambda t: t.to(torch.bfloat16) if t.is_floating_point() else t)(torch.as_tensor(a)))
    B, S, D, F = 1, 2048, 640, 1728
    return {
        "x": _w((lambda *s: torch.randn(*s, dtype=torch.bfloat16) * 0.05)(B, S, D)),
        "w_gate": _w((lambda *s: torch.randn(*s, dtype=torch.bfloat16) * 0.05)(D, F)),
        "w_up": _w((lambda *s: torch.randn(*s, dtype=torch.bfloat16) * 0.05)(D, F)),
        "w_down": _w((lambda *s: torch.randn(*s, dtype=torch.bfloat16) * 0.05)(F, D)),
    }

def reference(x, w_gate, w_up, w_down):
    g = _silu(x @ w_gate)
    u = x @ w_up
    return (g * u) @ w_down
```

```python
import sys
from asmlib import *

XPITCH=1280; WPITCH=3456
H_OFF=0
WDP_OFF=0x800000
H_BYTES=128*54*1024
WDP_BYTES=8*54*5*1024
NLOG2E=0xbfb8aa3b

def srd(a, base, lo, hi, nbytes):
    a(f"s_mov_b32 s{base}, s{lo}")
    a(f"s_mov_b32 s{base+1}, s{hi}")
    a(f"s_mov_b32 s{base+2}, {nbytes}")
    a(f"s_mov_b32 s{base+3}, 0x20000")

def gen_k1(a, name):
    kernel_begin(a,name)
    a("s_cmp_ge_u32 s2, 256")
    a(f"s_cbranch_scc1 {name}_exit")
    a("s_load_dwordx4 s[4:7], s[0:1], 0")
    a("s_load_dwordx4 s[36:39], s[0:1], 16")
    a("s_load_dwordx2 s[40:41], s[0:1], 48")
    a("v_lshrrev_b32 v1, 6, v0")
    a("v_and_b32 v0, 63, v0")
    a("v_readfirstlane_b32 s3, v1")
    a("s_and_b32 s42, s2, 7")
    a("s_lshr_b32 s43, s2, 3")
    a("s_and_b32 s44, s42, 1\ns_lshl_b32 s44, s44, 2\ns_and_b32 s45, s43, 3\ns_add_u32 s44, s44, s45")
    a("s_lshr_b32 s45, s42, 1\ns_mul_i32 s45, s45, 7\ns_lshr_b32 s46, s43, 2\ns_add_u32 s45, s45, s46")
    a("s_waitcnt lgkmcnt(0)")
    srd(a,8,4,5,2621440)
    srd(a,12,6,7,2211840)
    srd(a,16,36,37,2211840)
    srd(a,24,38,39,2211840)
    srd(a,20,40,41,H_BYTES)
    a(f"s_add_u32 s28, s40, {WDP_OFF}\ns_addc_u32 s29, s41, 0\ns_mov_b32 s30, {WDP_BYTES}\ns_mov_b32 s31, 0x20000")
    a("s_cmp_ge_u32 s46, 7")
    a(f"s_cbranch_scc1 {name}_repack_a")
    a("s_cmp_ge_u32 s45, 27")
    a(f"s_cbranch_scc1 {name}_repack_b")
    a("s_cmp_ge_u32 s3, 4")
    a(f"s_cbranch_scc1 {name}_loader")
    a("s_lshr_b32 s47, s3, 1")
    a("s_and_b32 s48, s3, 1")
    XS=[0,32768,65536]; WS=98304
    a("v_and_b32 v1, 31, v0")
    a("v_lshrrev_b32 v2, 5, v0")
    a("v_lshrrev_b32 v3, 1, v1\nv_and_b32 v3, 7, v3")
    a("s_lshl_b32 s49, s47, 14")
    a("v_lshlrev_b32 v13, 7, v1\nv_add_u32 v13, s49, v13")
    for s in range(4):
        a(f"v_add_u32 v14, {2*s}, v2\nv_xor_b32 v14, v14, v3\nv_lshlrev_b32 v14, 4, v14\nv_add_u32 v{4+s}, v13, v14")
        a(f"v_add_u32 v{8+s}, 0x10000, v{4+s}")
    a("v_lshrrev_b32 v14, 2, v0\nv_and_b32 v14, 3, v14")
    a("v_lshlrev_b32 v15, 3, v2\nv_add_u32 v15, v15, v14\nv_lshlrev_b32 v15, 7, v15")
    a("v_lshrrev_b32 v14, 1, v14\nv_xor_b32 v14, s48, v14\nv_lshlrev_b32 v14, 6, v14\nv_add_u32 v15, v15, v14")
    a("v_lshrrev_b32 v14, 4, v0\nv_and_b32 v14, 1, v14\nv_lshlrev_b32 v14, 5, v14\nv_add_u32 v15, v15, v14")
    a("v_and_b32 v14, 3, v0\nv_lshlrev_b32 v14, 3, v14\nv_add_u32 v15, v15, v14")
    a(f"v_add_u32 v12, {WS}, v15")
    a("v_lshrrev_b32 v14, 4, v0\nv_and_b32 v14, 1, v14\nv_mul_u32_u24 v14, 55296, v14")
    a("v_lshlrev_b32 v15, 8, v2\nv_add_u32 v14, v14, v15")
    a("v_and_b32 v15, 15, v0\nv_lshlrev_b32 v15, 4, v15\nv_add_u32 v3, v14, v15")
    a("s_lshl_b32 s50, s44, 4\ns_lshl_b32 s51, s47, 3\ns_add_u32 s50, s50, s51\ns_mul_i32 s50, s50, 54")
    a("s_lshl_b32 s51, s45, 1\ns_add_u32 s50, s50, s51\ns_add_u32 s50, s50, s48\ns_lshl_b32 s50, s50, 10")
    SET=[16,40]
    ACC=128
    def reads(c,s):
        slot=c%3; b=SET[s&1]; r=[]
        wo=slot*16384+s*2048
        xa=(4+s) if slot<2 else (8+s)
        xo=XS[slot] if slot<2 else 0
        r.append(f"ds_read_b64_tr_b16 v[{b}:{b+1}], v12 offset:{wo}")
        r.append(f"ds_read_b64_tr_b16 v[{b+2}:{b+3}], v12 offset:{wo+512}")
        r.append(f"ds_read_b128 v[{b+8}:{b+11}], v{xa} offset:{xo}")
        r.append(f"ds_read_b64_tr_b16 v[{b+4}:{b+5}], v12 offset:{wo+8192}")
        r.append(f"ds_read_b64_tr_b16 v[{b+6}:{b+7}], v12 offset:{wo+8192+512}")
        for tb in range(1,4):
            r.append(f"ds_read_b128 v[{b+8+4*tb}:{b+11+4*tb}], v{xa} offset:{xo+tb*4096}")
        return r
    def mfmas(c,s):
        b=SET[s&1]; m=[]
        first=(c==0 and s==0)
        for tb in range(4):
            for gu in range(2):
                d=ACC+(tb*2+gu)*16
                src="0" if first else f"v[{d}:{d+15}]"
                m.append(f"v_mfma_f32_32x32x16_bf16 v[{d}:{d+15}], v[{b+4*gu}:{b+4*gu+3}], v[{b+8+4*tb}:{b+11+4*tb}], {src}")
        return m
    def inter(m,r):
        ri=0
        for i,x in enumerate(m):
            a(x)
            for _ in range(2):
                if ri<len(r): a(r[ri]); ri+=1
        while ri<len(r): a(r[ri]); ri+=1
    for c in range(10):
        a("s_barrier")
        if c==0:
            for x in reads(0,0): a(x)
        else:
            inter(mfmas(c-1,3),reads(c,0))
        for s in range(3):
            a("s_waitcnt lgkmcnt(0)")
            inter(mfmas(c,s),reads(c,s+1))
        a("s_waitcnt lgkmcnt(0)")
    for x in mfmas(9,3): a(x)
    a("s_nop 15")
    a(f"s_mov_b32 s52, {NLOG2E}\ns_mov_b32 s53, {NLOG2E}")
    for tb in range(4):
        g=ACC+tb*32; u=g+16
        T=64
        for i in range(0,16,2):
            a(f"v_pk_mul_f32 v[{T+i}:{T+i+1}], v[{g+i}:{g+i+1}], s[52:53]")
        for i in range(16): a(f"v_exp_f32 v{T+i}, v{T+i}")
        for i in range(0,16,2):
            a(f"v_pk_mul_f32 v[{u+i}:{u+i+1}], v[{g+i}:{g+i+1}], v[{u+i}:{u+i+1}]")
        for i in range(0,16,2):
            a(f"v_pk_add_f32 v[{T+i}:{T+i+1}], v[{T+i}:{T+i+1}], 1.0 op_sel_hi:[1,0]")
        for i in range(16): a(f"v_rcp_f32 v{T+i}, v{T+i}")
        a("s_nop 0")
        for i in range(0,16,2):
            a(f"v_pk_mul_f32 v[{T+i}:{T+i+1}], v[{T+i}:{T+i+1}], v[{u+i}:{u+i+1}]")
        O=80+8*(tb&1)
        for i in range(8):
            a(f"v_cvt_pk_bf16_f32 v{O+i}, v{T+2*i}, v{T+2*i+1}")
        a(f"s_add_u32 s51, s50, {tb*2*55296}")
        a(f"buffer_store_dwordx4 v[{O}:{O+3}], v3, s[20:23], s51 offen")
        a(f"buffer_store_dwordx4 v[{O+4}:{O+7}], v3, s[20:23], s51 offen offset:512")
    a("s_endpgm")
    a(f"{name}_loader:")
    a("s_sub_u32 s47, s3, 4")
    a("v_lshrrev_b32 v1, 3, v0\nv_and_b32 v2, 7, v0")
    a("v_lshrrev_b32 v3, 1, v1")
    a("s_and_b32 s48, s47, 1\ns_lshl_b32 s48, s48, 2")
    a("v_xor_b32 v4, v2, v3\nv_xor_b32 v4, s48, v4\nv_lshlrev_b32 v4, 4, v4")
    a(f"v_mul_u32_u24 v5, {XPITCH}, v1\nv_add_u32 v4, v4, v5")
    a("v_lshrrev_b32 v5, 2, v2\nv_and_b32 v6, 1, v3\nv_xor_b32 v5, v5, v6\nv_lshlrev_b32 v5, 6, v5")
    a("v_and_b32 v6, 3, v2\nv_lshlrev_b32 v6, 4, v6\nv_add_u32 v5, v5, v6")
    a(f"v_mul_u32_u24 v6, {WPITCH}, v1\nv_add_u32 v5, v5, v6")
    a(f"s_lshl_b32 s49, s44, 8\ns_lshl_b32 s50, s47, 3\ns_add_u32 s49, s49, s50\ns_mul_i32 s49, s49, {XPITCH}")
    a(f"s_mul_i32 s50, s50, {WPITCH}\ns_lshl_b32 s51, s45, 7\ns_add_u32 s50, s50, s51")
    a("s_lshl_b32 s51, s47, 10")
    def issue(c):
        slot=c%3
        for j in range(8):
            a(f"s_add_u32 m0, s51, {[0,32768,65536][slot]+j*4096}")
            a(f"s_add_u32 s52, s49, {c*128+j*32*XPITCH}")
            a(f"buffer_load_dwordx4 v4, s[8:11], s52 offen lds")
            if j in (1,3,5,7):
                q=j>>1
                mtx=q>>1; jj=q&1
                a(f"s_add_u32 m0, s51, {98304+slot*16384+mtx*8192+jj*4096}")
                a(f"s_add_u32 s52, s50, {c*64*WPITCH+jj*32*WPITCH}")
                a(f"buffer_load_dwordx4 v5, s[{12+4*mtx}:{15+4*mtx}], s52 offen lds")
    issue(0); issue(1); issue(2)
    for c in range(10):
        if c==0: a("s_waitcnt vmcnt(24)")
        elif c<9: a("s_waitcnt vmcnt(12)")
        else: a("s_waitcnt vmcnt(0)")
        a("s_barrier")
        if c>=1 and c+2<=9: issue(c+2)
    a("s_endpgm")
    a(f"{name}_repack_a:")
    a("s_sub_u32 s47, s43, 28\ns_lshl_b32 s47, s47, 3\ns_add_u32 s47, s47, s42")
    a(f"s_branch {name}_repack")
    a(f"{name}_repack_b:")
    a("s_sub_u32 s47, s43, 24\ns_lshl_b32 s47, s47, 1\ns_add_u32 s47, s47, s42\ns_add_u32 s47, s47, 26")
    a(f"{name}_repack:")
    a("v_lshrrev_b32 v1, 5, v0\nv_lshlrev_b32 v1, 4, v1\nv_lshrrev_b32 v2, 4, v0\nv_and_b32 v2, 1, v2\nv_lshlrev_b32 v2, 2, v2\nv_add_u32 v1, v1, v2")
    a("v_mul_u32_u24 v1, 1280, v1\nv_and_b32 v2, 15, v0\nv_lshlrev_b32 v2, 1, v2\nv_add_u32 v1, v1, v2")
    a("v_add_u32 v2, 10240, v1")
    a("v_lshlrev_b32 v3, 4, v0")
    a("s_mul_i32 s48, s47, 54\ns_add_u32 s48, s48, s3")
    for j in range(7):
        a(f"s_add_u32 s49, s48, {8*j}")
        a("s_mul_i32 s50, s49, 52429\ns_lshr_b32 s50, s50, 21")
        a("s_mul_i32 s51, s50, 40\ns_sub_u32 s51, s49, s51")
        a("s_mul_i32 s52, s50, 40960\ns_lshl_b32 s53, s51, 5\ns_add_u32 s52, s52, s53")
        a("s_mul_i32 s53, s51, 52429\ns_lshr_b32 s53, s53, 18")
        a("s_mul_i32 s54, s53, 5\ns_sub_u32 s54, s51, s54")
        a(f"s_mul_i32 s53, s53, 54\ns_add_u32 s53, s53, s50\ns_mul_i32 s53, s53, 5\ns_add_u32 s53, s53, s54\ns_lshl_b32 s{60+j}, s53, 10")
        if j==6:
            a("s_cmp_ge_u32 s3, 6")
            a("s_cselect_b32 s52, 0x7f000000, s52")
            a(f"s_cselect_b32 s{60+j}, 0x7f000000, s{60+j}")
        for e in range(8):
            a(f"buffer_load_ushort v{16+8*j+e}, v{1+(e>>2)}, s[24:27], s52 offen offset:{(e&3)*1280}")
    for j in range(7):
        a(f"s_waitcnt vmcnt({8*(6-j)+j})")
        for d in range(4):
            a(f"v_lshl_or_b32 v{80+4*j+d}, v{16+8*j+2*d+1}, 16, v{16+8*j+2*d}")
        a(f"buffer_store_dwordx4 v[{80+4*j}:{83+4*j}], v3, s[28:31], s{60+j} offen")
    a(f"{name}_exit:")
    a("s_endpgm")

def gen_k2(a, name):
    kernel_begin(a,name)
    a("s_cmp_ge_u32 s2, 256")
    a(f"s_cbranch_scc1 {name}_exit")
    a("s_load_dwordx2 s[4:5], s[0:1], 32")
    a("s_load_dwordx2 s[40:41], s[0:1], 48")
    a("v_lshrrev_b32 v1, 6, v0")
    a("v_and_b32 v0, 63, v0")
    a("v_readfirstlane_b32 s3, v1")
    a("s_and_b32 s42, s2, 7\ns_lshr_b32 s43, s2, 3")
    a("s_lshl_b32 s44, s42, 2\ns_and_b32 s45, s43, 3\ns_add_u32 s44, s44, s45")
    a("s_lshr_b32 s45, s43, 2")
    a("s_waitcnt lgkmcnt(0)")
    srd(a,8,4,5,2621440)
    srd(a,20,40,41,H_BYTES)
    a(f"s_add_u32 s28, s40, {WDP_OFF}\ns_addc_u32 s29, s41, 0\ns_mov_b32 s30, {WDP_BYTES}\ns_mov_b32 s31, 0x20000")
    a("s_mul_i32 s46, s3, 14\ns_cmp_eq_u32 s3, 3\ns_cselect_b32 s47, 1, 0\ns_sub_u32 s46, s46, s47")
    a("s_mul_i32 s48, s44, 216\ns_add_u32 s48, s48, s46\ns_lshl_b32 s48, s48, 10")
    a("s_mul_i32 s49, s45, 54\ns_add_u32 s49, s49, s46\ns_mul_i32 s49, s49, 5120")
    a("v_lshlrev_b32 v1, 4, v0")
    for tb in range(4): a(f"v_add_u32 v{2+tb}, {tb*55296}, v1")
    a("v_add_u32 v6, 4096, v1")
    NS=14; DEP=6
    def setb(j): return 32+36*(j%DEP)
    def loads(j):
        b=setb(j); r=[]
        r.append(f"s_add_u32 s50, s48, {j*1024}\ns_add_u32 s51, s49, {j*5120}")
        if j==13:
            r[0]+="\ns_cmp_ge_u32 s3, 2\ns_cselect_b32 s50, 0x7f000000, s50\ns_cselect_b32 s51, 0x7f000000, s51"
        L=[]
        for nb in range(5):
            va="v1" if nb<4 else "v6"; off=(nb*1024) if nb<4 else 0
            L.append(f"buffer_load_dwordx4 v[{b+16+4*nb}:{b+19+4*nb}], {va}, s[28:31], s51 offen offset:{off}")
        for tb in range(4):
            L.append(f"buffer_load_dwordx4 v[{b+4*tb}:{b+3+4*tb}], v{2+tb}, s[20:23], s50 offen")
        L[0]=r[0]+"\n"+L[0]
        return L
    for j in range(DEP-1):
        for x in loads(j): a(x)
    for j in range(NS):
        later=min(NS-1-j, DEP-2)
        a(f"s_waitcnt vmcnt({9*later})")
        b=setb(j)
        L=loads(j+DEP-1) if j+DEP-1<NS else []
        k=0
        for nb in range(5):
            for tb in range(4):
                d=(tb*5+nb)*4
                src="0" if j==0 else f"a[{d}:{d+3}]"
                a(f"v_mfma_f32_16x16x32_bf16 a[{d}:{d+3}], v[{b+16+4*nb}:{b+19+4*nb}], v[{b+4*tb}:{b+3+4*tb}], {src}")
                if (nb*4+tb)%2==1 and k<len(L) and nb*4+tb>=1:
                    a(L[k]); k+=1
        while k<len(L): a(L[k]); k+=1
    a("s_nop 15")
    a("v_lshlrev_b32 v1, 4, v0")
    a("s_mul_i32 s50, s3, 20480")
    a("v_add_u32 v2, s50, v1")
    for tb in range(4):
        a(f"s_cmp_eq_u32 s3, {tb}")
        a(f"s_cbranch_scc1 {name}_skipw{tb}")
        for nb in range(5):
            d=(tb*5+nb)*4
            a(f"ds_write_b128 v2, a[{d}:{d+3}] offset:{(tb*5+nb)*1024}")
        a(f"{name}_skipw{tb}:")
    a("s_waitcnt lgkmcnt(0)")
    a("s_barrier")
    for tb in range(4):
        a(f"s_cmp_lg_u32 s3, {tb}")
        a(f"s_cbranch_scc1 {name}_skipr{tb}")
        for i in range(20):
            a(f"v_accvgpr_read_b32 v{32+i}, a{tb*20+i}")
        o=0
        others=[w for w in range(4) if w!=tb]
        for q,w in enumerate(others):
            a(f"v_add_u32 v3, {w*20480+tb*5*1024}, v1")
            for nb in range(5):
                a(f"ds_read_b128 v[{64+20*q+4*nb}:{67+20*q+4*nb}], v3 offset:{nb*1024}")
        a(f"{name}_skipr{tb}:")
    a("s_waitcnt lgkmcnt(0)")
    for q in range(3):
        for i in range(0,20,2):
            a(f"v_pk_add_f32 v[{32+i}:{33+i}], v[{32+i}:{33+i}], v[{64+20*q+i}:{65+20*q+i}]")
    a("v_and_b32 v4, 15, v0\nv_mul_u32_u24 v4, 1280, v4\nv_lshrrev_b32 v5, 4, v0\nv_lshlrev_b32 v5, 3, v5\nv_add_u32 v4, v4, v5")
    a("s_lshl_b32 s50, s44, 6\ns_lshl_b32 s51, s3, 4\ns_add_u32 s50, s50, s51\ns_mul_i32 s50, s50, 1280\ns_mul_i32 s51, s45, 160\ns_add_u32 s50, s50, s51")
    for nb in range(5):
        a(f"v_cvt_pk_bf16_f32 v{56+2*nb}, v{32+4*nb}, v{33+4*nb}")
        a(f"v_cvt_pk_bf16_f32 v{57+2*nb}, v{34+4*nb}, v{35+4*nb}")
        a(f"buffer_store_dwordx2 v[{56+2*nb}:{57+2*nb}], v4, s[8:11], s50 offen offset:{nb*32}")
    a(f"{name}_exit:")
    a("s_endpgm")

HEADER=open("standalone__swiglu_ffn__prompt.s.ref").read().split("; Override")[0]
def full():
    a=Asm()
    a(HEADER.rstrip())
    a("; @launch kernel=ffn1_kernel grid=(256,1,1) block=(512,1,1) lds=147456")
    a("; @launch kernel=ffn2_kernel grid=(256,1,1) block=(256,1,1) lds=81920")
    a('.amdgcn_target "amdgcn-amd-amdhsa--gfx950"')
    gen_k1(a,"ffn1_kernel")
    gen_k2(a,"ffn2_kernel")
    kernel_desc(a,"ffn1_kernel",256,256)
    kernel_desc(a,"ffn2_kernel",512,256)
    return a.text()
if __name__=="__main__":
    t=full()
    open("v1_final.s","w").write(t)
    build(t,[("ffn1_kernel",256,102,512),("ffn2_kernel",512,102,256)],"v1")
    print("ok")
```

```python
import sys
from asmlib import *
import gen_v1
t=gen_v1.full()
lines=t.split("\n")
def variant(launches, extra_kernels=""):
    out=[]
    done=False
    for l in lines:
        if l.startswith("; @launch"):
            if not done:
                out+=launches; done=True
            continue
        out.append(l)
    s="\n".join(out)
    return s
L1="; @launch kernel=ffn1_kernel grid=(256,1,1) block=(512,1,1) lds=147456"
L2="; @launch kernel=ffn2_kernel grid=(256,1,1) block=(256,1,1) lds=81920"
L0="; @launch kernel=nop_kernel grid=(256,1,1) block=(256,1,1) lds=0"
a=Asm(); kernel_begin(a,"nop_kernel"); a("s_endpgm")
d=Asm(); kernel_desc(d,"nop_kernel",8,8)
def addnop(s):
    i=s.index('.section .rodata')
    return s[:i]+a.text()+s[i:]+d.text()
open("va.s","w").write(variant([L1,L2]))
open("vb.s","w").write(addnop(variant([L1,L2,L0])))
open("vc.s","w").write(variant([L1,L2,L1,L2]))
open("vd.s","w").write(addnop(variant([L0,L1,L2])))
open("ve.s","w").write(variant([L1,L1,L2]))
open("vf.s","w").write(variant([L1,L2,L2]))
```

```python
import sys
from asmlib import *

XPITCH=1280; WPITCH=3456
H_OFF=0
WDP_OFF=0x800000
H_BYTES=128*54*1024
WDP_BYTES=8*54*5*1024
NLOG2E=0xbfb8aa3b

def srd(a, base, lo, hi, nbytes):
    a(f"s_mov_b32 s{base}, s{lo}")
    a(f"s_mov_b32 s{base+1}, s{hi}")
    a(f"s_mov_b32 s{base+2}, {nbytes}")
    a(f"s_mov_b32 s{base+3}, 0x20000")

STAMP=False
STAMP_OFF=0x1000000
def stamp(a, idx):
    if STAMP: a(f"s_memrealtime s[{70+2*idx}:{71+2*idx}]")
def stamp_out(a, n, woff, cond_wave=0):
    if not STAMP: return
    a("s_waitcnt vmcnt(0) lgkmcnt(0)")
    a(f"s_memrealtime s[{70+2*(n-1)}:{71+2*(n-1)}]")
    a("s_waitcnt lgkmcnt(0)")
    a(f"s_lshl_b32 s68, s2, 6\ns_add_u32 s68, s68, {STAMP_OFF+woff}")
    a("s_add_u32 s66, s40, s68\ns_addc_u32 s67, s41, 0")
    a("v_mov_b32 v1, 0")
    for i in range(n):
        a(f"v_mov_b32 v2, s{70+2*i}\nv_mov_b32 v3, s{71+2*i}\nglobal_store_dwordx2 v1, v[2:3], s[66:67] offset:{8*i}")
DBGWG=0
def stamp_dbg(a,n):
    a("s_waitcnt vmcnt(0) lgkmcnt(0)")
    a(f"s_memrealtime s[{70+2*(n-1)}:{71+2*(n-1)}]")
    a("s_memtime s[86:87]")
    a("s_load_dwordx2 s[66:67], s[0:1], 40")
    a("s_waitcnt lgkmcnt(0)")
    a("v_mov_b32 v1, 0")
    for i in range(n):
        a(f"s_sub_u32 s68, s{70+2*i}, s70\nv_mov_b32 v2, s68\nglobal_store_dword v1, v2, s[66:67] offset:{4*i}")
    a(f"s_sub_u32 s68, s86, s84\nv_mov_b32 v2, s68\nglobal_store_dword v1, v2, s[66:67] offset:{4*n}")
    a(f"v_mov_b32 v2, s70\nglobal_store_dword v1, v2, s[66:67] offset:{4*n+4}")
def gen_k1(a, name):
    kernel_begin(a,name)
    stamp(a,0)
    if STAMP=="dbg": a("s_memtime s[84:85]")
    a("s_cmp_ge_u32 s2, 256")
    a(f"s_cbranch_scc1 {name}_exit")
    a("s_load_dwordx4 s[4:7], s[0:1], 0")
    a("s_load_dwordx4 s[36:39], s[0:1], 16")
    a("s_load_dwordx2 s[40:41], s[0:1], 48")
    a("v_lshrrev_b32 v1, 6, v0")
    a("v_and_b32 v0, 63, v0")
    a("v_readfirstlane_b32 s3, v1")
    a("s_and_b32 s42, s2, 7")
    a("s_lshr_b32 s43, s2, 3")
    a("s_and_b32 s44, s42, 1\ns_lshl_b32 s44, s44, 2\ns_and_b32 s45, s43, 3\ns_add_u32 s44, s44, s45")
    a("s_lshr_b32 s45, s42, 1\ns_mul_i32 s45, s45, 7\ns_lshr_b32 s46, s43, 2\ns_add_u32 s45, s45, s46")
    a("s_waitcnt lgkmcnt(0)")
    srd(a,8,4,5,2621440)
    srd(a,12,6,7,2211840)
    srd(a,16,36,37,2211840)
    srd(a,24,38,39,2211840)
    srd(a,20,40,41,H_BYTES)
    a(f"s_add_u32 s28, s40, {WDP_OFF}\ns_addc_u32 s29, s41, 0\ns_mov_b32 s30, {WDP_BYTES}\ns_mov_b32 s31, 0x20000")
    a("s_cmp_ge_u32 s46, 7")
    a(f"s_cbranch_scc1 {name}_repack_a")
    a("s_cmp_ge_u32 s45, 27")
    a(f"s_cbranch_scc1 {name}_repack_b")
    a("s_cmp_ge_u32 s3, 4")
    a(f"s_cbranch_scc1 {name}_loader")
    a("s_lshr_b32 s47, s3, 1")
    a("s_and_b32 s48, s3, 1")
    XS=[0,32768,65536]; WS=98304
    a("v_and_b32 v1, 31, v0")
    a("v_lshrrev_b32 v2, 5, v0")
    a("v_lshrrev_b32 v3, 1, v1\nv_and_b32 v3, 7, v3")
    a("s_lshl_b32 s49, s47, 14")
    a("v_lshlrev_b32 v13, 7, v1\nv_add_u32 v13, s49, v13")
    for s in range(4):
        a(f"v_add_u32 v14, {2*s}, v2\nv_xor_b32 v14, v14, v3\nv_lshlrev_b32 v14, 4, v14\nv_add_u32 v{4+s}, v13, v14")
        a(f"v_add_u32 v{8+s}, 0x10000, v{4+s}")
    a("v_lshrrev_b32 v14, 2, v0\nv_and_b32 v14, 3, v14")
    a("v_lshlrev_b32 v15, 3, v2\nv_add_u32 v15, v15, v14\nv_lshlrev_b32 v15, 7, v15")
    a("v_lshrrev_b32 v14, 1, v14\nv_xor_b32 v14, s48, v14\nv_lshlrev_b32 v14, 6, v14\nv_add_u32 v15, v15, v14")
    a("v_lshrrev_b32 v14, 4, v0\nv_and_b32 v14, 1, v14\nv_lshlrev_b32 v14, 5, v14\nv_add_u32 v15, v15, v14")
    a("v_and_b32 v14, 3, v0\nv_lshlrev_b32 v14, 3, v14\nv_add_u32 v15, v15, v14")
    a(f"v_add_u32 v12, {WS}, v15")
    a("v_lshrrev_b32 v14, 4, v0\nv_and_b32 v14, 1, v14\nv_mul_u32_u24 v14, 55296, v14")
    a("v_lshlrev_b32 v15, 8, v2\nv_add_u32 v14, v14, v15")
    a("v_and_b32 v15, 15, v0\nv_lshlrev_b32 v15, 4, v15\nv_add_u32 v3, v14, v15")
    a("s_lshl_b32 s50, s44, 4\ns_lshl_b32 s51, s47, 3\ns_add_u32 s50, s50, s51\ns_mul_i32 s50, s50, 54")
    a("s_lshl_b32 s51, s45, 1\ns_add_u32 s50, s50, s51\ns_add_u32 s50, s50, s48\ns_lshl_b32 s50, s50, 10")
    SET=[16,40]
    ACC=128
    def reads(c,s):
        slot=c%3; b=SET[s&1]; r=[]
        wo=slot*16384+s*2048
        xa=(4+s) if slot<2 else (8+s)
        xo=XS[slot] if slot<2 else 0
        r.append(f"ds_read_b64_tr_b16 v[{b}:{b+1}], v12 offset:{wo}")
        r.append(f"ds_read_b64_tr_b16 v[{b+2}:{b+3}], v12 offset:{wo+512}")
        r.append(f"ds_read_b128 v[{b+8}:{b+11}], v{xa} offset:{xo}")
        r.append(f"ds_read_b64_tr_b16 v[{b+4}:{b+5}], v12 offset:{wo+8192}")
        r.append(f"ds_read_b64_tr_b16 v[{b+6}:{b+7}], v12 offset:{wo+8192+512}")
        for tb in range(1,4):
            r.append(f"ds_read_b128 v[{b+8+4*tb}:{b+11+4*tb}], v{xa} offset:{xo+tb*4096}")
        return r
    def mfmas(c,s):
        b=SET[s&1]; m=[]
        first=(c==0 and s==0)
        for tb in range(4):
            for gu in range(2):
                d=ACC+(tb*2+gu)*16
                src="0" if first else f"v[{d}:{d+15}]"
                m.append(f"v_mfma_f32_32x32x16_bf16 v[{d}:{d+15}], v[{b+4*gu}:{b+4*gu+3}], v[{b+8+4*tb}:{b+11+4*tb}], {src}")
        return m
    def inter(m,r):
        ri=0
        for i,x in enumerate(m):
            a(x)
            for _ in range(2):
                if ri<len(r): a(r[ri]); ri+=1
        while ri<len(r): a(r[ri]); ri+=1
    for c in range(10):
        a("s_barrier")
        if c==0: stamp(a,1)
        if c==5: stamp(a,2)
        if c==0:
            for x in reads(0,0): a(x)
        else:
            inter(mfmas(c-1,3),reads(c,0))
        for s in range(3):
            a("s_waitcnt lgkmcnt(0)")
            inter(mfmas(c,s),reads(c,s+1))
        a("s_waitcnt lgkmcnt(0)")
    for x in mfmas(9,3): a(x)
    stamp(a,3)
    a("s_nop 15")
    a(f"s_mov_b32 s52, {NLOG2E}\ns_mov_b32 s53, {NLOG2E}")
    for tb in range(4):
        g=ACC+tb*32; u=g+16
        T=64
        for i in range(0,16,2):
            a(f"v_pk_mul_f32 v[{T+i}:{T+i+1}], v[{g+i}:{g+i+1}], s[52:53]")
        for i in range(16): a(f"v_exp_f32 v{T+i}, v{T+i}")
        for i in range(0,16,2):
            a(f"v_pk_mul_f32 v[{u+i}:{u+i+1}], v[{g+i}:{g+i+1}], v[{u+i}:{u+i+1}]")
        for i in range(0,16,2):
            a(f"v_pk_add_f32 v[{T+i}:{T+i+1}], v[{T+i}:{T+i+1}], 1.0 op_sel_hi:[1,0]")
        for i in range(16): a(f"v_rcp_f32 v{T+i}, v{T+i}")
        a("s_nop 0")
        for i in range(0,16,2):
            a(f"v_pk_mul_f32 v[{T+i}:{T+i+1}], v[{T+i}:{T+i+1}], v[{u+i}:{u+i+1}]")
        O=80+8*(tb&1)
        for i in range(8):
            a(f"v_cvt_pk_bf16_f32 v{O+i}, v{T+2*i}, v{T+2*i+1}")
        a(f"s_add_u32 s51, s50, {tb*2*55296}")
        a(f"buffer_store_dwordx4 v[{O}:{O+3}], v3, s[20:23], s51 offen")
        a(f"buffer_store_dwordx4 v[{O+4}:{O+7}], v3, s[20:23], s51 offen offset:512")
    if STAMP:
        stamp(a,4)
        a("s_cmp_lg_u32 s3, 0")
        a(f"s_cbranch_scc1 {name}_exit")
        if STAMP=="dbg":
            a(f"s_cmp_lg_u32 s2, {DBGWG}")
            a(f"s_cbranch_scc1 {name}_exit")
            stamp_dbg(a,6)
        else: stamp_out(a,6,0)
    a("s_endpgm")
    a(f"{name}_loader:")
    a("s_sub_u32 s47, s3, 4")
    a("v_lshrrev_b32 v1, 3, v0\nv_and_b32 v2, 7, v0")
    a("v_lshrrev_b32 v3, 1, v1")
    a("s_and_b32 s48, s47, 1\ns_lshl_b32 s48, s48, 2")
    a("v_xor_b32 v4, v2, v3\nv_xor_b32 v4, s48, v4\nv_lshlrev_b32 v4, 4, v4")
    a(f"v_mul_u32_u24 v5, {XPITCH}, v1\nv_add_u32 v4, v4, v5")
    a("v_lshrrev_b32 v5, 2, v2\nv_and_b32 v6, 1, v3\nv_xor_b32 v5, v5, v6\nv_lshlrev_b32 v5, 6, v5")
    a("v_and_b32 v6, 3, v2\nv_lshlrev_b32 v6, 4, v6\nv_add_u32 v5, v5, v6")
    a(f"v_mul_u32_u24 v6, {WPITCH}, v1\nv_add_u32 v5, v5, v6")
    a(f"s_lshl_b32 s49, s44, 8\ns_lshl_b32 s50, s47, 3\ns_add_u32 s49, s49, s50\ns_mul_i32 s49, s49, {XPITCH}")
    a(f"s_mul_i32 s50, s50, {WPITCH}\ns_lshl_b32 s51, s45, 7\ns_add_u32 s50, s50, s51")
    a("s_lshl_b32 s51, s47, 10")
    def issue(c):
        slot=c%3
        for j in range(8):
            a(f"s_add_u32 m0, s51, {[0,32768,65536][slot]+j*4096}")
            a(f"s_add_u32 s52, s49, {c*128+j*32*XPITCH}")
            a(f"buffer_load_dwordx4 v4, s[8:11], s52 offen lds")
            if j in (1,3,5,7):
                q=j>>1
                mtx=q>>1; jj=q&1
                a(f"s_add_u32 m0, s51, {98304+slot*16384+mtx*8192+jj*4096}")
                a(f"s_add_u32 s52, s50, {c*64*WPITCH+jj*32*WPITCH}")
                a(f"buffer_load_dwordx4 v5, s[{12+4*mtx}:{15+4*mtx}], s52 offen lds")
    issue(0); issue(1); issue(2)
    for c in range(10):
        if c==0: a("s_waitcnt vmcnt(24)")
        elif c<9: a("s_waitcnt vmcnt(12)")
        else: a("s_waitcnt vmcnt(0)")
        a("s_barrier")
        if c>=1 and c+2<=9: issue(c+2)
    a("s_endpgm")
    a(f"{name}_repack_a:")
    a("s_sub_u32 s47, s43, 28\ns_lshl_b32 s47, s47, 3\ns_add_u32 s47, s47, s42")
    a(f"s_branch {name}_repack")
    a(f"{name}_repack_b:")
    a("s_sub_u32 s47, s43, 24\ns_lshl_b32 s47, s47, 1\ns_add_u32 s47, s47, s42\ns_add_u32 s47, s47, 26")
    a(f"{name}_repack:")
    a("v_lshrrev_b32 v1, 5, v0\nv_lshlrev_b32 v1, 4, v1\nv_lshrrev_b32 v2, 4, v0\nv_and_b32 v2, 1, v2\nv_lshlrev_b32 v2, 2, v2\nv_add_u32 v1, v1, v2")
    a("v_mul_u32_u24 v1, 1280, v1\nv_and_b32 v2, 15, v0\nv_lshlrev_b32 v2, 1, v2\nv_add_u32 v1, v1, v2")
    a("v_add_u32 v2, 10240, v1")
    a("v_lshlrev_b32 v3, 4, v0")
    a("s_mul_i32 s48, s47, 54\ns_add_u32 s48, s48, s3")
    for j in range(7):
        a(f"s_add_u32 s49, s48, {8*j}")
        a("s_mul_i32 s50, s49, 52429\ns_lshr_b32 s50, s50, 21")
        a("s_mul_i32 s51, s50, 40\ns_sub_u32 s51, s49, s51")
        a("s_mul_i32 s52, s50, 40960\ns_lshl_b32 s53, s51, 5\ns_add_u32 s52, s52, s53")
        a("s_mul_i32 s53, s51, 52429\ns_lshr_b32 s53, s53, 18")
        a("s_mul_i32 s54, s53, 5\ns_sub_u32 s54, s51, s54")
        a(f"s_mul_i32 s53, s53, 54\ns_add_u32 s53, s53, s50\ns_mul_i32 s53, s53, 5\ns_add_u32 s53, s53, s54\ns_lshl_b32 s{60+j}, s53, 10")
        if j==6:
            a("s_cmp_ge_u32 s3, 6")
            a("s_cselect_b32 s52, 0x7f000000, s52")
            a(f"s_cselect_b32 s{60+j}, 0x7f000000, s{60+j}")
        for e in range(8):
            a(f"buffer_load_ushort v{16+8*j+e}, v{1+(e>>2)}, s[24:27], s52 offen offset:{(e&3)*1280}")
    for j in range(7):
        a(f"s_waitcnt vmcnt({8*(6-j)+j})")
        for d in range(4):
            a(f"v_lshl_or_b32 v{80+4*j+d}, v{16+8*j+2*d+1}, 16, v{16+8*j+2*d}")
        a(f"buffer_store_dwordx4 v[{80+4*j}:{83+4*j}], v3, s[28:31], s{60+j} offen")
    a(f"{name}_exit:")
    a("s_endpgm")

def gen_k2(a, name):
    kernel_begin(a,name)
    stamp(a,0)
    a("s_cmp_ge_u32 s2, 256")
    a(f"s_cbranch_scc1 {name}_exit")
    a("s_load_dwordx2 s[4:5], s[0:1], 32")
    a("s_load_dwordx2 s[40:41], s[0:1], 48")
    a("v_lshrrev_b32 v1, 6, v0")
    a("v_and_b32 v0, 63, v0")
    a("v_readfirstlane_b32 s3, v1")
    a("s_and_b32 s42, s2, 7\ns_lshr_b32 s43, s2, 3")
    a("s_lshl_b32 s44, s42, 2\ns_and_b32 s45, s43, 3\ns_add_u32 s44, s44, s45")
    a("s_lshr_b32 s45, s43, 2")
    a("s_waitcnt lgkmcnt(0)")
    srd(a,8,4,5,2621440)
    srd(a,20,40,41,H_BYTES)
    a(f"s_add_u32 s28, s40, {WDP_OFF}\ns_addc_u32 s29, s41, 0\ns_mov_b32 s30, {WDP_BYTES}\ns_mov_b32 s31, 0x20000")
    a("s_mul_i32 s46, s3, 14\ns_cmp_eq_u32 s3, 3\ns_cselect_b32 s47, 1, 0\ns_sub_u32 s46, s46, s47")
    a("s_mul_i32 s48, s44, 216\ns_add_u32 s48, s48, s46\ns_lshl_b32 s48, s48, 10")
    a("s_mul_i32 s49, s45, 54\ns_add_u32 s49, s49, s46\ns_mul_i32 s49, s49, 5120")
    a("v_lshlrev_b32 v1, 4, v0")
    for tb in range(4): a(f"v_add_u32 v{2+tb}, {tb*55296}, v1")
    a("v_add_u32 v6, 4096, v1")
    NS=14; DEP=6
    def setb(j): return 32+36*(j%DEP)
    def loads(j):
        b=setb(j); r=[]
        r.append(f"s_add_u32 s50, s48, {j*1024}\ns_add_u32 s51, s49, {j*5120}")
        if j==13:
            r[0]+="\ns_cmp_ge_u32 s3, 2\ns_cselect_b32 s50, 0x7f000000, s50\ns_cselect_b32 s51, 0x7f000000, s51"
        L=[]
        for nb in range(5):
            va="v1" if nb<4 else "v6"; off=(nb*1024) if nb<4 else 0
            L.append(f"buffer_load_dwordx4 v[{b+16+4*nb}:{b+19+4*nb}], {va}, s[28:31], s51 offen offset:{off}")
        for tb in range(4):
            L.append(f"buffer_load_dwordx4 v[{b+4*tb}:{b+3+4*tb}], v{2+tb}, s[20:23], s50 offen")
        L[0]=r[0]+"\n"+L[0]
        return L
    for j in range(DEP-1):
        for x in loads(j): a(x)
    for j in range(NS):
        later=min(NS-1-j, DEP-2)
        a(f"s_waitcnt vmcnt({9*later})")
        if j==0: stamp(a,1)
        if j==7: stamp(a,2)
        b=setb(j)
        L=loads(j+DEP-1) if j+DEP-1<NS else []
        k=0
        for nb in range(5):
            for tb in range(4):
                d=(tb*5+nb)*4
                src="0" if j==0 else f"a[{d}:{d+3}]"
                a(f"v_mfma_f32_16x16x32_bf16 a[{d}:{d+3}], v[{b+16+4*nb}:{b+19+4*nb}], v[{b+4*tb}:{b+3+4*tb}], {src}")
                if (nb*4+tb)%2==1 and k<len(L) and nb*4+tb>=1:
                    a(L[k]); k+=1
        while k<len(L): a(L[k]); k+=1
    stamp(a,3)
    a("s_nop 15")
    a("v_lshlrev_b32 v1, 4, v0")
    a("s_mul_i32 s50, s3, 20480")
    a("v_add_u32 v2, s50, v1")
    for tb in range(4):
        a(f"s_cmp_eq_u32 s3, {tb}")
        a(f"s_cbranch_scc1 {name}_skipw{tb}")
        for nb in range(5):
            d=(tb*5+nb)*4
            a(f"ds_write_b128 v2, a[{d}:{d+3}] offset:{(tb*5+nb)*1024}")
        a(f"{name}_skipw{tb}:")
    a("s_waitcnt lgkmcnt(0)")
    a("s_barrier")
    for tb in range(4):
        a(f"s_cmp_lg_u32 s3, {tb}")
        a(f"s_cbranch_scc1 {name}_skipr{tb}")
        for i in range(20):
            a(f"v_accvgpr_read_b32 v{32+i}, a{tb*20+i}")
        o=0
        others=[w for w in range(4) if w!=tb]
        for q,w in enumerate(others):
            a(f"v_add_u32 v3, {w*20480+tb*5*1024}, v1")
            for nb in range(5):
                a(f"ds_read_b128 v[{64+20*q+4*nb}:{67+20*q+4*nb}], v3 offset:{nb*1024}")
        a(f"{name}_skipr{tb}:")
    a("s_waitcnt lgkmcnt(0)")
    for q in range(3):
        for i in range(0,20,2):
            a(f"v_pk_add_f32 v[{32+i}:{33+i}], v[{32+i}:{33+i}], v[{64+20*q+i}:{65+20*q+i}]")
    a("v_and_b32 v4, 15, v0\nv_mul_u32_u24 v4, 1280, v4\nv_lshrrev_b32 v5, 4, v0\nv_lshlrev_b32 v5, 3, v5\nv_add_u32 v4, v4, v5")
    a("s_lshl_b32 s50, s44, 6\ns_lshl_b32 s51, s3, 4\ns_add_u32 s50, s50, s51\ns_mul_i32 s50, s50, 1280\ns_mul_i32 s51, s45, 160\ns_add_u32 s50, s50, s51")
    for nb in range(5):
        a(f"v_cvt_pk_bf16_f32 v{56+2*nb}, v{32+4*nb}, v{33+4*nb}")
        a(f"v_cvt_pk_bf16_f32 v{57+2*nb}, v{34+4*nb}, v{35+4*nb}")
        a(f"buffer_store_dwordx2 v[{56+2*nb}:{57+2*nb}], v4, s[8:11], s50 offen offset:{nb*32}")
    if STAMP:
        stamp(a,4)
        a("s_cmp_lg_u32 s3, 0")
        a(f"s_cbranch_scc1 {name}_exit")
        if STAMP!="dbg": stamp_out(a,6,0x10000)
    a(f"{name}_exit:")
    a("s_endpgm")

HEADER=open("standalone__swiglu_ffn__prompt.s.ref").read().split("; Override")[0]
def full():
    a=Asm()
    a(HEADER.rstrip())
    a("; @launch kernel=ffn1_kernel grid=(256,1,1) block=(512,1,1) lds=147456")
    a("; @launch kernel=ffn2_kernel grid=(256,1,1) block=(256,1,1) lds=81920")
    a('.amdgcn_target "amdgcn-amd-amdhsa--gfx950"')
    gen_k1(a,"ffn1_kernel")
    gen_k2(a,"ffn2_kernel")
    kernel_desc(a,"ffn1_kernel",256,256)
    kernel_desc(a,"ffn2_kernel",512,256)
    return a.text()
if __name__=="__main__":
    if len(sys.argv)>1 and sys.argv[1]=="stamp":
        STAMP=True
        t=full()
        build(t,[("ffn1_kernel",256,102,512),("ffn2_kernel",512,102,256)],"v1s")
        sys.exit(0)
    if len(sys.argv)>1 and sys.argv[1]=="dbg":
        STAMP="dbg"
        open("vdbg.s","w").write(full())
        sys.exit(0)
    t=full()
    open("v1_final.s","w").write(t)
    build(t,[("ffn1_kernel",256,102,512),("ffn2_kernel",512,102,256)],"v1")
    print("ok")
```

```python
import sys
from asmlib import *

XPITCH=1280; WPITCH=3456
H_OFF=0
WDP_OFF=0x800000
H_BYTES=128*54*1024
WDP_BYTES=8*54*5*1024
NLOG2E=0xbfb8aa3b

def srd(a, base, lo, hi, nbytes):
    a(f"s_mov_b32 s{base}, s{lo}")
    a(f"s_mov_b32 s{base+1}, s{hi}")
    a(f"s_mov_b32 s{base+2}, {nbytes}")
    a(f"s_mov_b32 s{base+3}, 0x20000")

STAMP=False
STAMP_OFF=0x1000000
def stamp(a, idx):
    if STAMP: a(f"s_memrealtime s[{70+2*idx}:{71+2*idx}]")
def stamp_out(a, n, woff, cond_wave=0):
    if not STAMP: return
    a("s_waitcnt vmcnt(0) lgkmcnt(0)")
    a(f"s_memrealtime s[{70+2*(n-1)}:{71+2*(n-1)}]")
    a("s_waitcnt lgkmcnt(0)")
    a(f"s_lshl_b32 s68, s2, 6\ns_add_u32 s68, s68, {STAMP_OFF+woff}")
    a("s_add_u32 s66, s40, s68\ns_addc_u32 s67, s41, 0")
    a("v_mov_b32 v1, 0")
    for i in range(n):
        a(f"v_mov_b32 v2, s{70+2*i}\nv_mov_b32 v3, s{71+2*i}\nglobal_store_dwordx2 v1, v[2:3], s[66:67] offset:{8*i}")
DBGWG=0
def stamp_dbg(a,n):
    a("s_waitcnt vmcnt(0) lgkmcnt(0)")
    a(f"s_memrealtime s[{70+2*(n-1)}:{71+2*(n-1)}]")
    a("s_memtime s[86:87]")
    a("s_load_dwordx2 s[66:67], s[0:1], 40")
    a("s_waitcnt lgkmcnt(0)")
    a("v_mov_b32 v1, 0")
    for i in range(n):
        a(f"s_sub_u32 s68, s{70+2*i}, s70\nv_mov_b32 v2, s68\nglobal_store_dword v1, v2, s[66:67] offset:{4*i}")
    a(f"s_sub_u32 s68, s86, s84\nv_mov_b32 v2, s68\nglobal_store_dword v1, v2, s[66:67] offset:{4*n}")
    a(f"v_mov_b32 v2, s70\nglobal_store_dword v1, v2, s[66:67] offset:{4*n+4}")
def gen_k1(a, name):
    kernel_begin(a,name)
    stamp(a,0)
    if STAMP=="dbg": a("s_memtime s[84:85]")
    a("s_cmp_ge_u32 s2, 256")
    a(f"s_cbranch_scc1 {name}_exit")
    a("s_load_dwordx4 s[4:7], s[0:1], 0")
    a("s_load_dwordx4 s[36:39], s[0:1], 16")
    a("s_load_dwordx2 s[40:41], s[0:1], 48")
    a("v_lshrrev_b32 v1, 6, v0")
    a("v_and_b32 v0, 63, v0")
    a("v_readfirstlane_b32 s3, v1")
    a("s_and_b32 s42, s2, 7")
    a("s_lshr_b32 s43, s2, 3")
    a("s_and_b32 s44, s42, 1\ns_lshl_b32 s44, s44, 2\ns_and_b32 s45, s43, 3\ns_add_u32 s44, s44, s45")
    a("s_lshr_b32 s45, s42, 1\ns_mul_i32 s45, s45, 7\ns_lshr_b32 s46, s43, 2\ns_add_u32 s45, s45, s46")
    a("s_waitcnt lgkmcnt(0)")
    srd(a,8,4,5,2621440)
    srd(a,12,6,7,2211840)
    srd(a,16,36,37,2211840)
    srd(a,24,38,39,2211840)
    srd(a,20,40,41,H_BYTES)
    a(f"s_add_u32 s28, s40, {WDP_OFF}\ns_addc_u32 s29, s41, 0\ns_mov_b32 s30, {WDP_BYTES}\ns_mov_b32 s31, 0x20000")
    a("s_cmp_ge_u32 s46, 7")
    a(f"s_cbranch_scc1 {name}_repack_a")
    a("s_cmp_ge_u32 s45, 27")
    a(f"s_cbranch_scc1 {name}_repack_b")
    a("s_cmp_ge_u32 s3, 4")
    a(f"s_cbranch_scc1 {name}_loader")
    a("s_lshr_b32 s47, s3, 1")
    a("s_and_b32 s48, s3, 1")
    XS=[0,32768,65536]; WS=98304
    a("v_and_b32 v1, 31, v0")
    a("v_lshrrev_b32 v2, 5, v0")
    a("v_lshrrev_b32 v3, 1, v1\nv_and_b32 v3, 7, v3")
    a("s_lshl_b32 s49, s47, 14")
    a("v_lshlrev_b32 v13, 7, v1\nv_add_u32 v13, s49, v13")
    for s in range(4):
        a(f"v_add_u32 v14, {2*s}, v2\nv_xor_b32 v14, v14, v3\nv_lshlrev_b32 v14, 4, v14\nv_add_u32 v{4+s}, v13, v14")
        a(f"v_add_u32 v{8+s}, 0x10000, v{4+s}")
    a("v_lshrrev_b32 v14, 2, v0\nv_and_b32 v14, 3, v14")
    a("v_lshlrev_b32 v15, 3, v2\nv_add_u32 v15, v15, v14\nv_lshlrev_b32 v15, 7, v15")
    a("v_lshrrev_b32 v14, 1, v14\nv_xor_b32 v14, s48, v14\nv_lshlrev_b32 v14, 6, v14\nv_add_u32 v15, v15, v14")
    a("v_lshrrev_b32 v14, 4, v0\nv_and_b32 v14, 1, v14\nv_lshlrev_b32 v14, 5, v14\nv_add_u32 v15, v15, v14")
    a("v_and_b32 v14, 3, v0\nv_lshlrev_b32 v14, 3, v14\nv_add_u32 v15, v15, v14")
    a(f"v_add_u32 v12, {WS}, v15")
    a("v_lshrrev_b32 v14, 4, v0\nv_and_b32 v14, 1, v14\nv_mul_u32_u24 v14, 55296, v14")
    a("v_lshlrev_b32 v15, 8, v2\nv_add_u32 v14, v14, v15")
    a("v_and_b32 v15, 15, v0\nv_lshlrev_b32 v15, 4, v15\nv_add_u32 v3, v14, v15")
    a("s_lshl_b32 s50, s44, 4\ns_lshl_b32 s51, s47, 3\ns_add_u32 s50, s50, s51\ns_mul_i32 s50, s50, 54")
    a("s_lshl_b32 s51, s45, 1\ns_add_u32 s50, s50, s51\ns_add_u32 s50, s50, s48\ns_lshl_b32 s50, s50, 10")
    SET=[16,40]
    ACC=128
    def reads(c,s):
        slot=c%3; b=SET[s&1]; r=[]
        wo=slot*16384+s*2048
        xa=(4+s) if slot<2 else (8+s)
        xo=XS[slot] if slot<2 else 0
        r.append(f"ds_read_b64_tr_b16 v[{b}:{b+1}], v12 offset:{wo}")
        r.append(f"ds_read_b64_tr_b16 v[{b+2}:{b+3}], v12 offset:{wo+512}")
        r.append(f"ds_read_b128 v[{b+8}:{b+11}], v{xa} offset:{xo}")
        r.append(f"ds_read_b64_tr_b16 v[{b+4}:{b+5}], v12 offset:{wo+8192}")
        r.append(f"ds_read_b64_tr_b16 v[{b+6}:{b+7}], v12 offset:{wo+8192+512}")
        for tb in range(1,4):
            r.append(f"ds_read_b128 v[{b+8+4*tb}:{b+11+4*tb}], v{xa} offset:{xo+tb*4096}")
        return r
    def mfmas(c,s):
        b=SET[s&1]; m=[]
        first=(c==0 and s==0)
        for tb in range(4):
            for gu in range(2):
                d=ACC+(tb*2+gu)*16
                src="0" if first else f"v[{d}:{d+15}]"
                m.append(f"v_mfma_f32_32x32x16_bf16 v[{d}:{d+15}], v[{b+4*gu}:{b+4*gu+3}], v[{b+8+4*tb}:{b+11+4*tb}], {src}")
        return m
    def inter(m,r):
        ri=0
        for i,x in enumerate(m):
            a(x)
            for _ in range(2):
                if ri<len(r): a(r[ri]); ri+=1
        while ri<len(r): a(r[ri]); ri+=1
    for c in range(10):
        a("s_barrier")
        if c==0: stamp(a,1)
        if c==5: stamp(a,2)
        if c==0:
            for x in reads(0,0): a(x)
        else:
            inter(mfmas(c-1,3),reads(c,0))
        for s in range(3):
            a("s_waitcnt lgkmcnt(0)")
            inter(mfmas(c,s),reads(c,s+1))
        a("s_waitcnt lgkmcnt(0)")
    for x in mfmas(9,3): a(x)
    stamp(a,3)
    a("s_nop 15")
    a(f"s_mov_b32 s52, {NLOG2E}\ns_mov_b32 s53, {NLOG2E}")
    for tb in range(4):
        g=ACC+tb*32; u=g+16
        T=64
        for i in range(0,16,2):
            a(f"v_pk_mul_f32 v[{T+i}:{T+i+1}], v[{g+i}:{g+i+1}], s[52:53]")
        for i in range(16): a(f"v_exp_f32 v{T+i}, v{T+i}")
        for i in range(0,16,2):
            a(f"v_pk_mul_f32 v[{u+i}:{u+i+1}], v[{g+i}:{g+i+1}], v[{u+i}:{u+i+1}]")
        for i in range(0,16,2):
            a(f"v_pk_add_f32 v[{T+i}:{T+i+1}], v[{T+i}:{T+i+1}], 1.0 op_sel_hi:[1,0]")
        for i in range(16): a(f"v_rcp_f32 v{T+i}, v{T+i}")
        a("s_nop 0")
        for i in range(0,16,2):
            a(f"v_pk_mul_f32 v[{T+i}:{T+i+1}], v[{T+i}:{T+i+1}], v[{u+i}:{u+i+1}]")
        O=80+8*(tb&1)
        for i in range(8):
            a(f"v_cvt_pk_bf16_f32 v{O+i}, v{T+2*i}, v{T+2*i+1}")
        a(f"s_add_u32 s51, s50, {tb*2*55296}")
        a(f"buffer_store_dwordx4 v[{O}:{O+3}], v3, s[20:23], s51 offen")
        a(f"buffer_store_dwordx4 v[{O+4}:{O+7}], v3, s[20:23], s51 offen offset:512")
    if STAMP:
        stamp(a,4)
        a("s_cmp_lg_u32 s3, 0")
        a(f"s_cbranch_scc1 {name}_exit")
        if STAMP=="dbg":
            a(f"s_cmp_lg_u32 s2, {DBGWG}")
            a(f"s_cbranch_scc1 {name}_exit")
            stamp_out(a,6,0)
        else: stamp_out(a,6,0)
    a("s_endpgm")
    a(f"{name}_loader:")
    a("s_sub_u32 s47, s3, 4")
    a("v_lshrrev_b32 v1, 3, v0\nv_and_b32 v2, 7, v0")
    a("v_lshrrev_b32 v3, 1, v1")
    a("s_and_b32 s48, s47, 1\ns_lshl_b32 s48, s48, 2")
    a("v_xor_b32 v4, v2, v3\nv_xor_b32 v4, s48, v4\nv_lshlrev_b32 v4, 4, v4")
    a(f"v_mul_u32_u24 v5, {XPITCH}, v1\nv_add_u32 v4, v4, v5")
    a("v_lshrrev_b32 v5, 2, v2\nv_and_b32 v6, 1, v3\nv_xor_b32 v5, v5, v6\nv_lshlrev_b32 v5, 6, v5")
    a("v_and_b32 v6, 3, v2\nv_lshlrev_b32 v6, 4, v6\nv_add_u32 v5, v5, v6")
    a(f"v_mul_u32_u24 v6, {WPITCH}, v1\nv_add_u32 v5, v5, v6")
    a(f"s_lshl_b32 s49, s44, 8\ns_lshl_b32 s50, s47, 3\ns_add_u32 s49, s49, s50\ns_mul_i32 s49, s49, {XPITCH}")
    a(f"s_mul_i32 s50, s50, {WPITCH}\ns_lshl_b32 s51, s45, 7\ns_add_u32 s50, s50, s51")
    a("s_lshl_b32 s51, s47, 10")
    def issue(c):
        slot=c%3
        for j in range(8):
            a(f"s_add_u32 m0, s51, {[0,32768,65536][slot]+j*4096}")
            a(f"s_add_u32 s52, s49, {c*128+j*32*XPITCH}")
            a(f"buffer_load_dwordx4 v4, s[8:11], s52 offen lds")
            if j in (1,3,5,7):
                q=j>>1
                mtx=q>>1; jj=q&1
                a(f"s_add_u32 m0, s51, {98304+slot*16384+mtx*8192+jj*4096}")
                a(f"s_add_u32 s52, s50, {c*64*WPITCH+jj*32*WPITCH}")
                a(f"buffer_load_dwordx4 v5, s[{12+4*mtx}:{15+4*mtx}], s52 offen lds")
    issue(0); issue(1); issue(2)
    for c in range(10):
        if c==0: a("s_waitcnt vmcnt(24)")
        elif c<9: a("s_waitcnt vmcnt(12)")
        else: a("s_waitcnt vmcnt(0)")
        a("s_barrier")
        if c>=1 and c+2<=9: issue(c+2)
    a("s_endpgm")
    a(f"{name}_repack_a:")
    a("s_sub_u32 s47, s43, 28\ns_lshl_b32 s47, s47, 3\ns_add_u32 s47, s47, s42")
    a(f"s_branch {name}_repack")
    a(f"{name}_repack_b:")
    a("s_sub_u32 s47, s43, 24\ns_lshl_b32 s47, s47, 1\ns_add_u32 s47, s47, s42\ns_add_u32 s47, s47, 26")
    a(f"{name}_repack:")
    a("v_lshrrev_b32 v1, 5, v0\nv_lshlrev_b32 v1, 4, v1\nv_lshrrev_b32 v2, 4, v0\nv_and_b32 v2, 1, v2\nv_lshlrev_b32 v2, 2, v2\nv_add_u32 v1, v1, v2")
    a("v_mul_u32_u24 v1, 1280, v1\nv_and_b32 v2, 15, v0\nv_lshlrev_b32 v2, 1, v2\nv_add_u32 v1, v1, v2")
    a("v_add_u32 v2, 10240, v1")
    a("v_lshlrev_b32 v3, 4, v0")
    a("s_mul_i32 s48, s47, 54\ns_add_u32 s48, s48, s3")
    for j in range(7):
        a(f"s_add_u32 s49, s48, {8*j}")
        a("s_mul_i32 s50, s49, 52429\ns_lshr_b32 s50, s50, 21")
        a("s_mul_i32 s51, s50, 40\ns_sub_u32 s51, s49, s51")
        a("s_mul_i32 s52, s50, 40960\ns_lshl_b32 s53, s51, 5\ns_add_u32 s52, s52, s53")
        a("s_mul_i32 s53, s51, 52429\ns_lshr_b32 s53, s53, 18")
        a("s_mul_i32 s54, s53, 5\ns_sub_u32 s54, s51, s54")
        a(f"s_mul_i32 s53, s53, 54\ns_add_u32 s53, s53, s50\ns_mul_i32 s53, s53, 5\ns_add_u32 s53, s53, s54\ns_lshl_b32 s{60+j}, s53, 10")
        if j==6:
            a("s_cmp_ge_u32 s3, 6")
            a("s_cselect_b32 s52, 0x7f000000, s52")
            a(f"s_cselect_b32 s{60+j}, 0x7f000000, s{60+j}")
        for e in range(8):
            a(f"buffer_load_ushort v{16+8*j+e}, v{1+(e>>2)}, s[24:27], s52 offen offset:{(e&3)*1280}")
    for j in range(7):
        a(f"s_waitcnt vmcnt({8*(6-j)+j})")
        for d in range(4):
            a(f"v_lshl_or_b32 v{80+4*j+d}, v{16+8*j+2*d+1}, 16, v{16+8*j+2*d}")
        a(f"buffer_store_dwordx4 v[{80+4*j}:{83+4*j}], v3, s[28:31], s{60+j} offen")
    a(f"{name}_exit:")
    a("s_endpgm")

def gen_k2(a, name):
    kernel_begin(a,name)
    stamp(a,0)
    if STAMP=="dbg": a("s_memtime s[84:85]")
    a("s_cmp_ge_u32 s2, 256")
    a(f"s_cbranch_scc1 {name}_exit")
    a("s_load_dwordx2 s[4:5], s[0:1], 32")
    a("s_load_dwordx2 s[40:41], s[0:1], 48")
    a("v_lshrrev_b32 v1, 6, v0")
    a("v_and_b32 v0, 63, v0")
    a("v_readfirstlane_b32 s3, v1")
    a("s_and_b32 s42, s2, 7\ns_lshr_b32 s43, s2, 3")
    a("s_lshl_b32 s44, s42, 2\ns_and_b32 s45, s43, 3\ns_add_u32 s44, s44, s45")
    a("s_lshr_b32 s45, s43, 2")
    a("s_waitcnt lgkmcnt(0)")
    srd(a,8,4,5,2621440)
    srd(a,20,40,41,H_BYTES)
    a(f"s_add_u32 s28, s40, {WDP_OFF}\ns_addc_u32 s29, s41, 0\ns_mov_b32 s30, {WDP_BYTES}\ns_mov_b32 s31, 0x20000")
    a("s_mul_i32 s46, s3, 14\ns_cmp_eq_u32 s3, 3\ns_cselect_b32 s47, 1, 0\ns_sub_u32 s46, s46, s47")
    a("s_mul_i32 s48, s44, 216\ns_add_u32 s48, s48, s46\ns_lshl_b32 s48, s48, 10")
    a("s_mul_i32 s49, s45, 54\ns_add_u32 s49, s49, s46\ns_mul_i32 s49, s49, 5120")
    a("v_lshlrev_b32 v1, 4, v0")
    for tb in range(4): a(f"v_add_u32 v{2+tb}, {tb*55296}, v1")
    a("v_add_u32 v6, 4096, v1")
    NS=14; DEP=6
    def setb(j): return 32+36*(j%DEP)
    def loads(j):
        b=setb(j); r=[]
        r.append(f"s_add_u32 s50, s48, {j*1024}\ns_add_u32 s51, s49, {j*5120}")
        if j==13:
            r[0]+="\ns_cmp_ge_u32 s3, 2\ns_cselect_b32 s50, 0x7f000000, s50\ns_cselect_b32 s51, 0x7f000000, s51"
        L=[]
        for nb in range(5):
            va="v1" if nb<4 else "v6"; off=(nb*1024) if nb<4 else 0
            L.append(f"buffer_load_dwordx4 v[{b+16+4*nb}:{b+19+4*nb}], {va}, s[28:31], s51 offen offset:{off}")
        for tb in range(4):
            L.append(f"buffer_load_dwordx4 v[{b+4*tb}:{b+3+4*tb}], v{2+tb}, s[20:23], s50 offen")
        L[0]=r[0]+"\n"+L[0]
        return L
    for j in range(DEP-1):
        for x in loads(j): a(x)
    for j in range(NS):
        later=min(NS-1-j, DEP-2)
        a(f"s_waitcnt vmcnt({9*later})")
        if j==0: stamp(a,1)
        if j==7: stamp(a,2)
        b=setb(j)
        L=loads(j+DEP-1) if j+DEP-1<NS else []
        k=0
        for nb in range(5):
            for tb in range(4):
                d=(tb*5+nb)*4
                src="0" if j==0 else f"a[{d}:{d+3}]"
                a(f"v_mfma_f32_16x16x32_bf16 a[{d}:{d+3}], v[{b+16+4*nb}:{b+19+4*nb}], v[{b+4*tb}:{b+3+4*tb}], {src}")
                if (nb*4+tb)%2==1 and k<len(L) and nb*4+tb>=1:
                    a(L[k]); k+=1
        while k<len(L): a(L[k]); k+=1
    stamp(a,3)
    a("s_nop 15")
    a("v_lshlrev_b32 v1, 4, v0")
    a("s_mul_i32 s50, s3, 20480")
    a("v_add_u32 v2, s50, v1")
    for tb in range(4):
        a(f"s_cmp_eq_u32 s3, {tb}")
        a(f"s_cbranch_scc1 {name}_skipw{tb}")
        for nb in range(5):
            d=(tb*5+nb)*4
            a(f"ds_write_b128 v2, a[{d}:{d+3}] offset:{(tb*5+nb)*1024}")
        a(f"{name}_skipw{tb}:")
    a("s_waitcnt lgkmcnt(0)")
    a("s_barrier")
    for tb in range(4):
        a(f"s_cmp_lg_u32 s3, {tb}")
        a(f"s_cbranch_scc1 {name}_skipr{tb}")
        for i in range(20):
            a(f"v_accvgpr_read_b32 v{32+i}, a{tb*20+i}")
        o=0
        others=[w for w in range(4) if w!=tb]
        for q,w in enumerate(others):
            a(f"v_add_u32 v3, {w*20480+tb*5*1024}, v1")
            for nb in range(5):
                a(f"ds_read_b128 v[{64+20*q+4*nb}:{67+20*q+4*nb}], v3 offset:{nb*1024}")
        a(f"{name}_skipr{tb}:")
    a("s_waitcnt lgkmcnt(0)")
    for q in range(3):
        for i in range(0,20,2):
            a(f"v_pk_add_f32 v[{32+i}:{33+i}], v[{32+i}:{33+i}], v[{64+20*q+i}:{65+20*q+i}]")
    a("v_and_b32 v4, 15, v0\nv_mul_u32_u24 v4, 1280, v4\nv_lshrrev_b32 v5, 4, v0\nv_lshlrev_b32 v5, 3, v5\nv_add_u32 v4, v4, v5")
    a("s_lshl_b32 s50, s44, 6\ns_lshl_b32 s51, s3, 4\ns_add_u32 s50, s50, s51\ns_mul_i32 s50, s50, 1280\ns_mul_i32 s51, s45, 160\ns_add_u32 s50, s50, s51")
    for nb in range(5):
        a(f"v_cvt_pk_bf16_f32 v{56+2*nb}, v{32+4*nb}, v{33+4*nb}")
        a(f"v_cvt_pk_bf16_f32 v{57+2*nb}, v{34+4*nb}, v{35+4*nb}")
        a(f"buffer_store_dwordx2 v[{56+2*nb}:{57+2*nb}], v4, s[8:11], s50 offen offset:{nb*32}")
    if STAMP:
        stamp(a,4)
        a("s_cmp_lg_u32 s3, 0")
        a(f"s_cbranch_scc1 {name}_exit")
        if STAMP!="dbg": stamp_out(a,6,0x10000)
        else:
            a(f"s_cmp_lg_u32 s2, {DBGWG}")
            a(f"s_cbranch_scc1 {name}_exit")
            a("s_waitcnt vmcnt(0) lgkmcnt(0)")
            a("s_memrealtime s[80:81]")
            a("s_memtime s[86:87]")
            a("s_load_dwordx2 s[66:67], s[0:1], 40")
            a(f"s_add_u32 s68, s40, {STAMP_OFF}\ns_addc_u32 s69, s41, 0")
            a("s_load_dwordx16 s[48:63], s[68:69], 0")
            a("s_waitcnt lgkmcnt(0)")
            a("v_mov_b32 v1, 0")
            for i in range(6):
                a(f"s_sub_u32 s68, s{48+2*i}, s48\nv_mov_b32 v2, s68\nglobal_store_dword v1, v2, s[66:67] offset:{4*i}")
            for i in range(6):
                a(f"s_sub_u32 s68, s{70+2*i}, s48\nv_mov_b32 v2, s68\nglobal_store_dword v1, v2, s[66:67] offset:{24+4*i}")
            a(f"s_sub_u32 s68, s86, s84\nv_mov_b32 v2, s68\nglobal_store_dword v1, v2, s[66:67] offset:48")
    a(f"{name}_exit:")
    a("s_endpgm")

HEADER=open("standalone__swiglu_ffn__prompt.s.ref").read().split("; Override")[0]
def full():
    a=Asm()
    a(HEADER.rstrip())
    a("; @launch kernel=ffn1_kernel grid=(256,1,1) block=(512,1,1) lds=147456")
    a("; @launch kernel=ffn2_kernel grid=(256,1,1) block=(256,1,1) lds=81920")
    a('.amdgcn_target "amdgcn-amd-amdhsa--gfx950"')
    gen_k1(a,"ffn1_kernel")
    gen_k2(a,"ffn2_kernel")
    kernel_desc(a,"ffn1_kernel",256,256)
    kernel_desc(a,"ffn2_kernel",512,256)
    return a.text()
if __name__=="__main__":
    if len(sys.argv)>1 and sys.argv[1]=="stamp":
        STAMP=True
        t=full()
        build(t,[("ffn1_kernel",256,102,512),("ffn2_kernel",512,102,256)],"v1s")
        sys.exit(0)
    if len(sys.argv)>1 and sys.argv[1]=="dbg":
        STAMP="dbg"
        open("vdbg.s","w").write(full())
        sys.exit(0)
    t=full()
    open("v1_final.s","w").write(t)
    build(t,[("ffn1_kernel",256,102,512),("ffn2_kernel",512,102,256)],"v1")
    print("ok")
```

```python
import sys
from asmlib import *

XPITCH=1280; WPITCH=3456
H_OFF=0
WDP_OFF=0x800000
H_BYTES=128*54*1024
WDP_BYTES=8*54*5*1024
NLOG2E=0xbfb8aa3b

def srd(a, base, lo, hi, nbytes):
    a(f"s_mov_b32 s{base}, s{lo}")
    a(f"s_mov_b32 s{base+1}, s{hi}")
    a(f"s_mov_b32 s{base+2}, {nbytes}")
    a(f"s_mov_b32 s{base+3}, 0x20000")

STAMP=False
STAMP_OFF=0x1000000
def stamp(a, idx):
    if STAMP: a(f"s_memrealtime s[{70+2*idx}:{71+2*idx}]")
def stamp_out(a, n, woff, cond_wave=0):
    if not STAMP: return
    a("s_waitcnt vmcnt(0) lgkmcnt(0)")
    a(f"s_memrealtime s[{70+2*(n-1)}:{71+2*(n-1)}]")
    a("s_waitcnt lgkmcnt(0)")
    a(f"s_lshl_b32 s68, s2, 6\ns_add_u32 s68, s68, {STAMP_OFF+woff}")
    a("s_add_u32 s66, s40, s68\ns_addc_u32 s67, s41, 0")
    a("v_mov_b32 v1, 0")
    for i in range(n):
        a(f"v_mov_b32 v2, s{70+2*i}\nv_mov_b32 v3, s{71+2*i}\nglobal_store_dwordx2 v1, v[2:3], s[66:67] offset:{8*i}")
DBGWG=0
SPIN=0
def stamp_dbg(a,n):
    a("s_waitcnt vmcnt(0) lgkmcnt(0)")
    a(f"s_memrealtime s[{70+2*(n-1)}:{71+2*(n-1)}]")
    a("s_memtime s[86:87]")
    a("s_load_dwordx2 s[66:67], s[0:1], 40")
    a("s_waitcnt lgkmcnt(0)")
    a("v_mov_b32 v1, 0")
    for i in range(n):
        a(f"s_sub_u32 s68, s{70+2*i}, s70\nv_mov_b32 v2, s68\nglobal_store_dword v1, v2, s[66:67] offset:{4*i}")
    a(f"s_sub_u32 s68, s86, s84\nv_mov_b32 v2, s68\nglobal_store_dword v1, v2, s[66:67] offset:{4*n}")
    a(f"v_mov_b32 v2, s70\nglobal_store_dword v1, v2, s[66:67] offset:{4*n+4}")
def gen_k1(a, name):
    kernel_begin(a,name)
    stamp(a,0)
    if STAMP=="dbg": a("s_memtime s[84:85]")
    a("s_cmp_ge_u32 s2, 256")
    a(f"s_cbranch_scc1 {name}_exit")
    a("s_load_dwordx4 s[4:7], s[0:1], 0")
    a("s_load_dwordx4 s[36:39], s[0:1], 16")
    a("s_load_dwordx2 s[40:41], s[0:1], 48")
    a("v_lshrrev_b32 v1, 6, v0")
    a("v_and_b32 v0, 63, v0")
    a("v_readfirstlane_b32 s3, v1")
    a("s_and_b32 s42, s2, 7")
    a("s_lshr_b32 s43, s2, 3")
    a("s_and_b32 s44, s42, 1\ns_lshl_b32 s44, s44, 2\ns_and_b32 s45, s43, 3\ns_add_u32 s44, s44, s45")
    a("s_lshr_b32 s45, s42, 1\ns_mul_i32 s45, s45, 7\ns_lshr_b32 s46, s43, 2\ns_add_u32 s45, s45, s46")
    a("s_waitcnt lgkmcnt(0)")
    srd(a,8,4,5,2621440)
    srd(a,12,6,7,2211840)
    srd(a,16,36,37,2211840)
    srd(a,24,38,39,2211840)
    srd(a,20,40,41,H_BYTES)
    a(f"s_add_u32 s28, s40, {WDP_OFF}\ns_addc_u32 s29, s41, 0\ns_mov_b32 s30, {WDP_BYTES}\ns_mov_b32 s31, 0x20000")
    a("s_cmp_ge_u32 s46, 7")
    a(f"s_cbranch_scc1 {name}_repack_a")
    a("s_cmp_ge_u32 s45, 27")
    a(f"s_cbranch_scc1 {name}_repack_b")
    a("s_cmp_ge_u32 s3, 4")
    a(f"s_cbranch_scc1 {name}_loader")
    a("s_lshr_b32 s47, s3, 1")
    a("s_and_b32 s48, s3, 1")
    XS=[0,32768,65536]; WS=98304
    a("v_and_b32 v1, 31, v0")
    a("v_lshrrev_b32 v2, 5, v0")
    a("v_lshrrev_b32 v3, 1, v1\nv_and_b32 v3, 7, v3")
    a("s_lshl_b32 s49, s47, 14")
    a("v_lshlrev_b32 v13, 7, v1\nv_add_u32 v13, s49, v13")
    for s in range(4):
        a(f"v_add_u32 v14, {2*s}, v2\nv_xor_b32 v14, v14, v3\nv_lshlrev_b32 v14, 4, v14\nv_add_u32 v{4+s}, v13, v14")
        a(f"v_add_u32 v{8+s}, 0x10000, v{4+s}")
    a("v_lshrrev_b32 v14, 2, v0\nv_and_b32 v14, 3, v14")
    a("v_lshlrev_b32 v15, 3, v2\nv_add_u32 v15, v15, v14\nv_lshlrev_b32 v15, 7, v15")
    a("v_lshrrev_b32 v14, 1, v14\nv_xor_b32 v14, s48, v14\nv_lshlrev_b32 v14, 6, v14\nv_add_u32 v15, v15, v14")
    a("v_lshrrev_b32 v14, 4, v0\nv_and_b32 v14, 1, v14\nv_lshlrev_b32 v14, 5, v14\nv_add_u32 v15, v15, v14")
    a("v_and_b32 v14, 3, v0\nv_lshlrev_b32 v14, 3, v14\nv_add_u32 v15, v15, v14")
    a(f"v_add_u32 v12, {WS}, v15")
    a("v_lshrrev_b32 v14, 4, v0\nv_and_b32 v14, 1, v14\nv_mul_u32_u24 v14, 55296, v14")
    a("v_lshlrev_b32 v15, 8, v2\nv_add_u32 v14, v14, v15")
    a("v_and_b32 v15, 15, v0\nv_lshlrev_b32 v15, 4, v15\nv_add_u32 v3, v14, v15")
    a("s_lshl_b32 s50, s44, 4\ns_lshl_b32 s51, s47, 3\ns_add_u32 s50, s50, s51\ns_mul_i32 s50, s50, 54")
    a("s_lshl_b32 s51, s45, 1\ns_add_u32 s50, s50, s51\ns_add_u32 s50, s50, s48\ns_lshl_b32 s50, s50, 10")
    SET=[16,40]
    ACC=128
    def reads(c,s):
        slot=c%3; b=SET[s&1]; r=[]
        wo=slot*16384+s*2048
        xa=(4+s) if slot<2 else (8+s)
        xo=XS[slot] if slot<2 else 0
        r.append(f"ds_read_b64_tr_b16 v[{b}:{b+1}], v12 offset:{wo}")
        r.append(f"ds_read_b64_tr_b16 v[{b+2}:{b+3}], v12 offset:{wo+512}")
        r.append(f"ds_read_b128 v[{b+8}:{b+11}], v{xa} offset:{xo}")
        r.append(f"ds_read_b64_tr_b16 v[{b+4}:{b+5}], v12 offset:{wo+8192}")
        r.append(f"ds_read_b64_tr_b16 v[{b+6}:{b+7}], v12 offset:{wo+8192+512}")
        for tb in range(1,4):
            r.append(f"ds_read_b128 v[{b+8+4*tb}:{b+11+4*tb}], v{xa} offset:{xo+tb*4096}")
        return r
    def mfmas(c,s):
        b=SET[s&1]; m=[]
        first=(c==0 and s==0)
        for tb in range(4):
            for gu in range(2):
                d=ACC+(tb*2+gu)*16
                src="0" if first else f"v[{d}:{d+15}]"
                m.append(f"v_mfma_f32_32x32x16_bf16 v[{d}:{d+15}], v[{b+4*gu}:{b+4*gu+3}], v[{b+8+4*tb}:{b+11+4*tb}], {src}")
        return m
    def inter(m,r):
        ri=0
        for i,x in enumerate(m):
            a(x)
            for _ in range(2):
                if ri<len(r): a(r[ri]); ri+=1
        while ri<len(r): a(r[ri]); ri+=1
    for c in range(10):
        a("s_barrier")
        if c==0: stamp(a,1)
        if c==5: stamp(a,2)
        if c==0:
            for x in reads(0,0): a(x)
        else:
            inter(mfmas(c-1,3),reads(c,0))
        for s in range(3):
            a("s_waitcnt lgkmcnt(0)")
            inter(mfmas(c,s),reads(c,s+1))
        a("s_waitcnt lgkmcnt(0)")
    for x in mfmas(9,3): a(x)
    stamp(a,3)
    a("s_nop 15")
    a(f"s_mov_b32 s52, {NLOG2E}\ns_mov_b32 s53, {NLOG2E}")
    for tb in range(4):
        g=ACC+tb*32; u=g+16
        T=64
        for i in range(0,16,2):
            a(f"v_pk_mul_f32 v[{T+i}:{T+i+1}], v[{g+i}:{g+i+1}], s[52:53]")
        for i in range(16): a(f"v_exp_f32 v{T+i}, v{T+i}")
        for i in range(0,16,2):
            a(f"v_pk_mul_f32 v[{u+i}:{u+i+1}], v[{g+i}:{g+i+1}], v[{u+i}:{u+i+1}]")
        for i in range(0,16,2):
            a(f"v_pk_add_f32 v[{T+i}:{T+i+1}], v[{T+i}:{T+i+1}], 1.0 op_sel_hi:[1,0]")
        for i in range(16): a(f"v_rcp_f32 v{T+i}, v{T+i}")
        a("s_nop 0")
        for i in range(0,16,2):
            a(f"v_pk_mul_f32 v[{T+i}:{T+i+1}], v[{T+i}:{T+i+1}], v[{u+i}:{u+i+1}]")
        O=80+8*(tb&1)
        for i in range(8):
            a(f"v_cvt_pk_bf16_f32 v{O+i}, v{T+2*i}, v{T+2*i+1}")
        a(f"s_add_u32 s51, s50, {tb*2*55296}")
        a(f"buffer_store_dwordx4 v[{O}:{O+3}], v3, s[20:23], s51 offen")
        a(f"buffer_store_dwordx4 v[{O+4}:{O+7}], v3, s[20:23], s51 offen offset:512")
    if STAMP:
        stamp(a,4)
        a("s_cmp_lg_u32 s3, 0")
        a(f"s_cbranch_scc1 {name}_exit")
        if STAMP=="dbg":
            a(f"s_cmp_lg_u32 s2, {DBGWG}")
            a(f"s_cbranch_scc1 {name}_exit")
            stamp_out(a,6,0)
        else: stamp_out(a,6,0)
    a("s_endpgm")
    a(f"{name}_loader:")
    a("s_sub_u32 s47, s3, 4")
    a("v_lshrrev_b32 v1, 3, v0\nv_and_b32 v2, 7, v0")
    a("v_lshrrev_b32 v3, 1, v1")
    a("s_and_b32 s48, s47, 1\ns_lshl_b32 s48, s48, 2")
    a("v_xor_b32 v4, v2, v3\nv_xor_b32 v4, s48, v4\nv_lshlrev_b32 v4, 4, v4")
    a(f"v_mul_u32_u24 v5, {XPITCH}, v1\nv_add_u32 v4, v4, v5")
    a("v_lshrrev_b32 v5, 2, v2\nv_and_b32 v6, 1, v3\nv_xor_b32 v5, v5, v6\nv_lshlrev_b32 v5, 6, v5")
    a("v_and_b32 v6, 3, v2\nv_lshlrev_b32 v6, 4, v6\nv_add_u32 v5, v5, v6")
    a(f"v_mul_u32_u24 v6, {WPITCH}, v1\nv_add_u32 v5, v5, v6")
    a(f"s_lshl_b32 s49, s44, 8\ns_lshl_b32 s50, s47, 3\ns_add_u32 s49, s49, s50\ns_mul_i32 s49, s49, {XPITCH}")
    a(f"s_mul_i32 s50, s50, {WPITCH}\ns_lshl_b32 s51, s45, 7\ns_add_u32 s50, s50, s51")
    a("s_lshl_b32 s51, s47, 10")
    def issue(c):
        slot=c%3
        for j in range(8):
            a(f"s_add_u32 m0, s51, {[0,32768,65536][slot]+j*4096}")
            a(f"s_add_u32 s52, s49, {c*128+j*32*XPITCH}")
            a(f"buffer_load_dwordx4 v4, s[8:11], s52 offen lds")
            if j in (1,3,5,7):
                q=j>>1
                mtx=q>>1; jj=q&1
                a(f"s_add_u32 m0, s51, {98304+slot*16384+mtx*8192+jj*4096}")
                a(f"s_add_u32 s52, s50, {c*64*WPITCH+jj*32*WPITCH}")
                a(f"buffer_load_dwordx4 v5, s[{12+4*mtx}:{15+4*mtx}], s52 offen lds")
    issue(0); issue(1); issue(2)
    for c in range(10):
        if c==0: a("s_waitcnt vmcnt(24)")
        elif c<9: a("s_waitcnt vmcnt(12)")
        else: a("s_waitcnt vmcnt(0)")
        a("s_barrier")
        if c>=1 and c+2<=9: issue(c+2)
    a("s_endpgm")
    a(f"{name}_repack_a:")
    a("s_sub_u32 s47, s43, 28\ns_lshl_b32 s47, s47, 3\ns_add_u32 s47, s47, s42")
    a(f"s_branch {name}_repack")
    a(f"{name}_repack_b:")
    a("s_sub_u32 s47, s43, 24\ns_lshl_b32 s47, s47, 1\ns_add_u32 s47, s47, s42\ns_add_u32 s47, s47, 26")
    a(f"{name}_repack:")
    a("v_lshrrev_b32 v1, 5, v0\nv_lshlrev_b32 v1, 4, v1\nv_lshrrev_b32 v2, 4, v0\nv_and_b32 v2, 1, v2\nv_lshlrev_b32 v2, 2, v2\nv_add_u32 v1, v1, v2")
    a("v_mul_u32_u24 v1, 1280, v1\nv_and_b32 v2, 15, v0\nv_lshlrev_b32 v2, 1, v2\nv_add_u32 v1, v1, v2")
    a("v_add_u32 v2, 10240, v1")
    a("v_lshlrev_b32 v3, 4, v0")
    a("s_mul_i32 s48, s47, 54\ns_add_u32 s48, s48, s3")
    for j in range(7):
        a(f"s_add_u32 s49, s48, {8*j}")
        a("s_mul_i32 s50, s49, 52429\ns_lshr_b32 s50, s50, 21")
        a("s_mul_i32 s51, s50, 40\ns_sub_u32 s51, s49, s51")
        a("s_mul_i32 s52, s50, 40960\ns_lshl_b32 s53, s51, 5\ns_add_u32 s52, s52, s53")
        a("s_mul_i32 s53, s51, 52429\ns_lshr_b32 s53, s53, 18")
        a("s_mul_i32 s54, s53, 5\ns_sub_u32 s54, s51, s54")
        a(f"s_mul_i32 s53, s53, 54\ns_add_u32 s53, s53, s50\ns_mul_i32 s53, s53, 5\ns_add_u32 s53, s53, s54\ns_lshl_b32 s{60+j}, s53, 10")
        if j==6:
            a("s_cmp_ge_u32 s3, 6")
            a("s_cselect_b32 s52, 0x7f000000, s52")
            a(f"s_cselect_b32 s{60+j}, 0x7f000000, s{60+j}")
        for e in range(8):
            a(f"buffer_load_ushort v{16+8*j+e}, v{1+(e>>2)}, s[24:27], s52 offen offset:{(e&3)*1280}")
    for j in range(7):
        a(f"s_waitcnt vmcnt({8*(6-j)+j})")
        for d in range(4):
            a(f"v_lshl_or_b32 v{80+4*j+d}, v{16+8*j+2*d+1}, 16, v{16+8*j+2*d}")
        a(f"buffer_store_dwordx4 v[{80+4*j}:{83+4*j}], v3, s[28:31], s{60+j} offen")
    a(f"{name}_exit:")
    a("s_endpgm")

def gen_k2(a, name):
    kernel_begin(a,name)
    stamp(a,0)
    if STAMP=="dbg": a("s_memtime s[84:85]")
    a("s_cmp_ge_u32 s2, 256")
    a(f"s_cbranch_scc1 {name}_exit")
    a("s_load_dwordx2 s[4:5], s[0:1], 32")
    a("s_load_dwordx2 s[40:41], s[0:1], 48")
    a("v_lshrrev_b32 v1, 6, v0")
    a("v_and_b32 v0, 63, v0")
    a("v_readfirstlane_b32 s3, v1")
    a("s_and_b32 s42, s2, 7\ns_lshr_b32 s43, s2, 3")
    a("s_lshl_b32 s44, s42, 2\ns_and_b32 s45, s43, 3\ns_add_u32 s44, s44, s45")
    a("s_lshr_b32 s45, s43, 2")
    a("s_waitcnt lgkmcnt(0)")
    srd(a,8,4,5,2621440)
    srd(a,20,40,41,H_BYTES)
    a(f"s_add_u32 s28, s40, {WDP_OFF}\ns_addc_u32 s29, s41, 0\ns_mov_b32 s30, {WDP_BYTES}\ns_mov_b32 s31, 0x20000")
    a("s_mul_i32 s46, s3, 14\ns_cmp_eq_u32 s3, 3\ns_cselect_b32 s47, 1, 0\ns_sub_u32 s46, s46, s47")
    a("s_mul_i32 s48, s44, 216\ns_add_u32 s48, s48, s46\ns_lshl_b32 s48, s48, 10")
    a("s_mul_i32 s49, s45, 54\ns_add_u32 s49, s49, s46\ns_mul_i32 s49, s49, 5120")
    a("v_lshlrev_b32 v1, 4, v0")
    for tb in range(4): a(f"v_add_u32 v{2+tb}, {tb*55296}, v1")
    a("v_add_u32 v6, 4096, v1")
    NS=14; DEP=6
    def setb(j): return 32+36*(j%DEP)
    def loads(j):
        b=setb(j); r=[]
        r.append(f"s_add_u32 s50, s48, {j*1024}\ns_add_u32 s51, s49, {j*5120}")
        if j==13:
            r[0]+="\ns_cmp_ge_u32 s3, 2\ns_cselect_b32 s50, 0x7f000000, s50\ns_cselect_b32 s51, 0x7f000000, s51"
        L=[]
        for nb in range(5):
            va="v1" if nb<4 else "v6"; off=(nb*1024) if nb<4 else 0
            L.append(f"buffer_load_dwordx4 v[{b+16+4*nb}:{b+19+4*nb}], {va}, s[28:31], s51 offen offset:{off}")
        for tb in range(4):
            L.append(f"buffer_load_dwordx4 v[{b+4*tb}:{b+3+4*tb}], v{2+tb}, s[20:23], s50 offen")
        L[0]=r[0]+"\n"+L[0]
        return L
    for j in range(DEP-1):
        for x in loads(j): a(x)
    for j in range(NS):
        later=min(NS-1-j, DEP-2)
        a(f"s_waitcnt vmcnt({9*later})")
        if j==0: stamp(a,1)
        if j==7: stamp(a,2)
        b=setb(j)
        L=loads(j+DEP-1) if j+DEP-1<NS else []
        k=0
        for nb in range(5):
            for tb in range(4):
                d=(tb*5+nb)*4
                src="0" if j==0 else f"a[{d}:{d+3}]"
                a(f"v_mfma_f32_16x16x32_bf16 a[{d}:{d+3}], v[{b+16+4*nb}:{b+19+4*nb}], v[{b+4*tb}:{b+3+4*tb}], {src}")
                if (nb*4+tb)%2==1 and k<len(L) and nb*4+tb>=1:
                    a(L[k]); k+=1
        while k<len(L): a(L[k]); k+=1
    stamp(a,3)
    a("s_nop 15")
    a("v_lshlrev_b32 v1, 4, v0")
    a("s_mul_i32 s50, s3, 20480")
    a("v_add_u32 v2, s50, v1")
    for tb in range(4):
        a(f"s_cmp_eq_u32 s3, {tb}")
        a(f"s_cbranch_scc1 {name}_skipw{tb}")
        for nb in range(5):
            d=(tb*5+nb)*4
            a(f"ds_write_b128 v2, a[{d}:{d+3}] offset:{(tb*5+nb)*1024}")
        a(f"{name}_skipw{tb}:")
    a("s_waitcnt lgkmcnt(0)")
    a("s_barrier")
    for tb in range(4):
        a(f"s_cmp_lg_u32 s3, {tb}")
        a(f"s_cbranch_scc1 {name}_skipr{tb}")
        for i in range(20):
            a(f"v_accvgpr_read_b32 v{32+i}, a{tb*20+i}")
        o=0
        others=[w for w in range(4) if w!=tb]
        for q,w in enumerate(others):
            a(f"v_add_u32 v3, {w*20480+tb*5*1024}, v1")
            for nb in range(5):
                a(f"ds_read_b128 v[{64+20*q+4*nb}:{67+20*q+4*nb}], v3 offset:{nb*1024}")
        a(f"{name}_skipr{tb}:")
    a("s_waitcnt lgkmcnt(0)")
    for q in range(3):
        for i in range(0,20,2):
            a(f"v_pk_add_f32 v[{32+i}:{33+i}], v[{32+i}:{33+i}], v[{64+20*q+i}:{65+20*q+i}]")
    a("v_and_b32 v4, 15, v0\nv_mul_u32_u24 v4, 1280, v4\nv_lshrrev_b32 v5, 4, v0\nv_lshlrev_b32 v5, 3, v5\nv_add_u32 v4, v4, v5")
    a("s_lshl_b32 s50, s44, 6\ns_lshl_b32 s51, s3, 4\ns_add_u32 s50, s50, s51\ns_mul_i32 s50, s50, 1280\ns_mul_i32 s51, s45, 160\ns_add_u32 s50, s50, s51")
    for nb in range(5):
        a(f"v_cvt_pk_bf16_f32 v{56+2*nb}, v{32+4*nb}, v{33+4*nb}")
        a(f"v_cvt_pk_bf16_f32 v{57+2*nb}, v{34+4*nb}, v{35+4*nb}")
        a(f"buffer_store_dwordx2 v[{56+2*nb}:{57+2*nb}], v4, s[8:11], s50 offen offset:{nb*32}")
    if STAMP:
        stamp(a,4)
        a("s_cmp_lg_u32 s3, 0")
        a(f"s_cbranch_scc1 {name}_exit")
        if STAMP!="dbg": stamp_out(a,6,0x10000)
        else:
            a(f"s_cmp_lg_u32 s2, {DBGWG}")
            a(f"s_cbranch_scc1 {name}_exit")
            a("s_waitcnt vmcnt(0) lgkmcnt(0)")
            a("s_memrealtime s[80:81]")
            a("s_memtime s[86:87]")
            a("s_load_dwordx2 s[66:67], s[0:1], 40")
            a(f"s_add_u32 s68, s40, {STAMP_OFF}\ns_addc_u32 s69, s41, 0")
            a("s_load_dwordx16 s[48:63], s[68:69], 0")
            a("s_waitcnt lgkmcnt(0)")
            a("v_mov_b32 v1, 0")
            for i in range(6):
                a(f"s_sub_u32 s68, s{48+2*i}, s48\nv_mov_b32 v2, s68\nglobal_store_dword v1, v2, s[66:67] offset:{4*i}")
            for i in range(6):
                a(f"s_sub_u32 s68, s{70+2*i}, s48\nv_mov_b32 v2, s68\nglobal_store_dword v1, v2, s[66:67] offset:{24+4*i}")
            a(f"s_sub_u32 s68, s86, s84\nv_mov_b32 v2, s68\nglobal_store_dword v1, v2, s[66:67] offset:48")
    a(f"{name}_exit:")
    a("s_endpgm")

HEADER=open("standalone__swiglu_ffn__prompt.s.ref").read().split("; Override")[0]
def full():
    a=Asm()
    a(HEADER.rstrip())
    a("; @launch kernel=ffn1_kernel grid=(256,1,1) block=(512,1,1) lds=147456")
    a("; @launch kernel=ffn2_kernel grid=(256,1,1) block=(256,1,1) lds=81920")
    a('.amdgcn_target "amdgcn-amd-amdhsa--gfx950"')
    gen_k1(a,"ffn1_kernel")
    gen_k2(a,"ffn2_kernel")
    kernel_desc(a,"ffn1_kernel",256,256)
    kernel_desc(a,"ffn2_kernel",512,256)
    return a.text()
if __name__=="__main__":
    if len(sys.argv)>1 and sys.argv[1]=="stamp":
        STAMP=True
        t=full()
        build(t,[("ffn1_kernel",256,102,512),("ffn2_kernel",512,102,256)],"v1s")
        sys.exit(0)
    if len(sys.argv)>1 and sys.argv[1]=="dbg":
        STAMP="dbg"
        open("vdbg.s","w").write(full())
        SPIN=6000
        open("vspin60.s","w").write(full())
        SPIN=10000
        open("vspin100.s","w").write(full())
        sys.exit(0)
    t=full()
    open("v1_final.s","w").write(t)
    build(t,[("ffn1_kernel",256,102,512),("ffn2_kernel",512,102,256)],"v1")
    print("ok")
```

```python
import sys
from asmlib import *

XPITCH=1280; WPITCH=3456
H_OFF=0
WDP_OFF=0x800000
H_BYTES=128*54*1024
WDP_BYTES=8*54*5*1024
NLOG2E=0xbfb8aa3b

def srd(a, base, lo, hi, nbytes):
    a(f"s_mov_b32 s{base}, s{lo}")
    a(f"s_mov_b32 s{base+1}, s{hi}")
    a(f"s_mov_b32 s{base+2}, {nbytes}")
    a(f"s_mov_b32 s{base+3}, 0x20000")

STAMP=False
STAMP_OFF=0x1000000
def stamp(a, idx):
    if STAMP: a(f"s_memrealtime s[{70+2*idx}:{71+2*idx}]")
def stamp_out(a, n, woff, cond_wave=0):
    if not STAMP: return
    a("s_waitcnt vmcnt(0) lgkmcnt(0)")
    a(f"s_memrealtime s[{70+2*(n-1)}:{71+2*(n-1)}]")
    a("s_waitcnt lgkmcnt(0)")
    a(f"s_lshl_b32 s68, s2, 6\ns_add_u32 s68, s68, {STAMP_OFF+woff}")
    a("s_add_u32 s66, s40, s68\ns_addc_u32 s67, s41, 0")
    a("v_mov_b32 v1, 0")
    for i in range(n):
        a(f"v_mov_b32 v2, s{70+2*i}\nv_mov_b32 v3, s{71+2*i}\nglobal_store_dwordx2 v1, v[2:3], s[66:67] offset:{8*i}")
DBGWG=0
SPIN=0
def stamp_dbg(a,n):
    a("s_waitcnt vmcnt(0) lgkmcnt(0)")
    a(f"s_memrealtime s[{70+2*(n-1)}:{71+2*(n-1)}]")
    a("s_memtime s[86:87]")
    a("s_load_dwordx2 s[66:67], s[0:1], 40")
    a("s_waitcnt lgkmcnt(0)")
    a("v_mov_b32 v1, 0")
    for i in range(n):
        a(f"s_sub_u32 s68, s{70+2*i}, s70\nv_mov_b32 v2, s68\nglobal_store_dword v1, v2, s[66:67] offset:{4*i}")
    a(f"s_sub_u32 s68, s86, s84\nv_mov_b32 v2, s68\nglobal_store_dword v1, v2, s[66:67] offset:{4*n}")
    a(f"v_mov_b32 v2, s70\nglobal_store_dword v1, v2, s[66:67] offset:{4*n+4}")
def gen_k1(a, name):
    kernel_begin(a,name)
    stamp(a,0)
    if STAMP=="dbg": a("s_memtime s[84:85]")
    a("s_cmp_ge_u32 s2, 256")
    a(f"s_cbranch_scc1 {name}_exit")
    a("s_load_dwordx4 s[4:7], s[0:1], 0")
    a("s_load_dwordx4 s[36:39], s[0:1], 16")
    a("s_load_dwordx2 s[40:41], s[0:1], 48")
    a("v_lshrrev_b32 v1, 6, v0")
    a("v_and_b32 v0, 63, v0")
    a("v_readfirstlane_b32 s3, v1")
    a("s_and_b32 s42, s2, 7")
    a("s_lshr_b32 s43, s2, 3")
    a("s_and_b32 s44, s42, 1\ns_lshl_b32 s44, s44, 2\ns_and_b32 s45, s43, 3\ns_add_u32 s44, s44, s45")
    a("s_lshr_b32 s45, s42, 1\ns_mul_i32 s45, s45, 7\ns_lshr_b32 s46, s43, 2\ns_add_u32 s45, s45, s46")
    a("s_waitcnt lgkmcnt(0)")
    srd(a,8,4,5,2621440)
    srd(a,12,6,7,2211840)
    srd(a,16,36,37,2211840)
    srd(a,24,38,39,2211840)
    srd(a,20,40,41,H_BYTES)
    a(f"s_add_u32 s28, s40, {WDP_OFF}\ns_addc_u32 s29, s41, 0\ns_mov_b32 s30, {WDP_BYTES}\ns_mov_b32 s31, 0x20000")
    a("s_cmp_ge_u32 s46, 7")
    a(f"s_cbranch_scc1 {name}_repack_a")
    a("s_cmp_ge_u32 s45, 27")
    a(f"s_cbranch_scc1 {name}_repack_b")
    a("s_cmp_ge_u32 s3, 4")
    a(f"s_cbranch_scc1 {name}_loader")
    a("s_lshr_b32 s47, s3, 1")
    a("s_and_b32 s48, s3, 1")
    XS=[0,32768,65536]; WS=98304
    a("v_and_b32 v1, 31, v0")
    a("v_lshrrev_b32 v2, 5, v0")
    a("v_lshrrev_b32 v3, 1, v1\nv_and_b32 v3, 7, v3")
    a("s_lshl_b32 s49, s47, 14")
    a("v_lshlrev_b32 v13, 7, v1\nv_add_u32 v13, s49, v13")
    for s in range(4):
        a(f"v_add_u32 v14, {2*s}, v2\nv_xor_b32 v14, v14, v3\nv_lshlrev_b32 v14, 4, v14\nv_add_u32 v{4+s}, v13, v14")
        a(f"v_add_u32 v{8+s}, 0x10000, v{4+s}")
    a("v_lshrrev_b32 v14, 2, v0\nv_and_b32 v14, 3, v14")
    a("v_lshlrev_b32 v15, 3, v2\nv_add_u32 v15, v15, v14\nv_lshlrev_b32 v15, 7, v15")
    a("v_lshrrev_b32 v14, 1, v14\nv_xor_b32 v14, s48, v14\nv_lshlrev_b32 v14, 6, v14\nv_add_u32 v15, v15, v14")
    a("v_lshrrev_b32 v14, 4, v0\nv_and_b32 v14, 1, v14\nv_lshlrev_b32 v14, 5, v14\nv_add_u32 v15, v15, v14")
    a("v_and_b32 v14, 3, v0\nv_lshlrev_b32 v14, 3, v14\nv_add_u32 v15, v15, v14")
    a(f"v_add_u32 v12, {WS}, v15")
    a("v_lshrrev_b32 v14, 4, v0\nv_and_b32 v14, 1, v14\nv_mul_u32_u24 v14, 55296, v14")
    a("v_lshlrev_b32 v15, 8, v2\nv_add_u32 v14, v14, v15")
    a("v_and_b32 v15, 15, v0\nv_lshlrev_b32 v15, 4, v15\nv_add_u32 v3, v14, v15")
    a("s_lshl_b32 s50, s44, 4\ns_lshl_b32 s51, s47, 3\ns_add_u32 s50, s50, s51\ns_mul_i32 s50, s50, 54")
    a("s_lshl_b32 s51, s45, 1\ns_add_u32 s50, s50, s51\ns_add_u32 s50, s50, s48\ns_lshl_b32 s50, s50, 10")
    SET=[16,40]
    ACC=128
    def reads(c,s):
        slot=c%3; b=SET[s&1]; r=[]
        wo=slot*16384+s*2048
        xa=(4+s) if slot<2 else (8+s)
        xo=XS[slot] if slot<2 else 0
        r.append(f"ds_read_b64_tr_b16 v[{b}:{b+1}], v12 offset:{wo}")
        r.append(f"ds_read_b64_tr_b16 v[{b+2}:{b+3}], v12 offset:{wo+512}")
        r.append(f"ds_read_b128 v[{b+8}:{b+11}], v{xa} offset:{xo}")
        r.append(f"ds_read_b64_tr_b16 v[{b+4}:{b+5}], v12 offset:{wo+8192}")
        r.append(f"ds_read_b64_tr_b16 v[{b+6}:{b+7}], v12 offset:{wo+8192+512}")
        for tb in range(1,4):
            r.append(f"ds_read_b128 v[{b+8+4*tb}:{b+11+4*tb}], v{xa} offset:{xo+tb*4096}")
        return r
    def mfmas(c,s):
        b=SET[s&1]; m=[]
        first=(c==0 and s==0)
        for tb in range(4):
            for gu in range(2):
                d=ACC+(tb*2+gu)*16
                src="0" if first else f"v[{d}:{d+15}]"
                m.append(f"v_mfma_f32_32x32x16_bf16 v[{d}:{d+15}], v[{b+4*gu}:{b+4*gu+3}], v[{b+8+4*tb}:{b+11+4*tb}], {src}")
        return m
    def inter(m,r):
        ri=0
        for i,x in enumerate(m):
            a(x)
            for _ in range(2):
                if ri<len(r): a(r[ri]); ri+=1
        while ri<len(r): a(r[ri]); ri+=1
    for c in range(10):
        a("s_barrier")
        if c==0: stamp(a,1)
        if c==5: stamp(a,2)
        if c==0:
            for x in reads(0,0): a(x)
        else:
            inter(mfmas(c-1,3),reads(c,0))
        for s in range(3):
            a("s_waitcnt lgkmcnt(0)")
            inter(mfmas(c,s),reads(c,s+1))
        a("s_waitcnt lgkmcnt(0)")
    for x in mfmas(9,3): a(x)
    stamp(a,3)
    a("s_nop 15")
    a(f"s_mov_b32 s52, {NLOG2E}\ns_mov_b32 s53, {NLOG2E}")
    for tb in range(4):
        g=ACC+tb*32; u=g+16
        T=64
        for i in range(0,16,2):
            a(f"v_pk_mul_f32 v[{T+i}:{T+i+1}], v[{g+i}:{g+i+1}], s[52:53]")
        for i in range(16): a(f"v_exp_f32 v{T+i}, v{T+i}")
        for i in range(0,16,2):
            a(f"v_pk_mul_f32 v[{u+i}:{u+i+1}], v[{g+i}:{g+i+1}], v[{u+i}:{u+i+1}]")
        for i in range(0,16,2):
            a(f"v_pk_add_f32 v[{T+i}:{T+i+1}], v[{T+i}:{T+i+1}], 1.0 op_sel_hi:[1,0]")
        for i in range(16): a(f"v_rcp_f32 v{T+i}, v{T+i}")
        a("s_nop 0")
        for i in range(0,16,2):
            a(f"v_pk_mul_f32 v[{T+i}:{T+i+1}], v[{T+i}:{T+i+1}], v[{u+i}:{u+i+1}]")
        O=80+8*(tb&1)
        for i in range(8):
            a(f"v_cvt_pk_bf16_f32 v{O+i}, v{T+2*i}, v{T+2*i+1}")
        a(f"s_add_u32 s51, s50, {tb*2*55296}")
        a(f"buffer_store_dwordx4 v[{O}:{O+3}], v3, s[20:23], s51 offen")
        a(f"buffer_store_dwordx4 v[{O+4}:{O+7}], v3, s[20:23], s51 offen offset:512")
    if STAMP:
        stamp(a,4)
        a("s_cmp_lg_u32 s3, 0")
        a(f"s_cbranch_scc1 {name}_exit")
        if STAMP=="dbg":
            a(f"s_cmp_lg_u32 s2, {DBGWG}")
            a(f"s_cbranch_scc1 {name}_exit")
            stamp_out(a,6,0)
        else: stamp_out(a,6,0)
    a("s_endpgm")
    a(f"{name}_loader:")
    a("s_sub_u32 s47, s3, 4")
    a("v_lshrrev_b32 v1, 3, v0\nv_and_b32 v2, 7, v0")
    a("v_lshrrev_b32 v3, 1, v1")
    a("s_and_b32 s48, s47, 1\ns_lshl_b32 s48, s48, 2")
    a("v_xor_b32 v4, v2, v3\nv_xor_b32 v4, s48, v4\nv_lshlrev_b32 v4, 4, v4")
    a(f"v_mul_u32_u24 v5, {XPITCH}, v1\nv_add_u32 v4, v4, v5")
    a("v_lshrrev_b32 v5, 2, v2\nv_and_b32 v6, 1, v3\nv_xor_b32 v5, v5, v6\nv_lshlrev_b32 v5, 6, v5")
    a("v_and_b32 v6, 3, v2\nv_lshlrev_b32 v6, 4, v6\nv_add_u32 v5, v5, v6")
    a(f"v_mul_u32_u24 v6, {WPITCH}, v1\nv_add_u32 v5, v5, v6")
    a(f"s_lshl_b32 s49, s44, 8\ns_lshl_b32 s50, s47, 3\ns_add_u32 s49, s49, s50\ns_mul_i32 s49, s49, {XPITCH}")
    a(f"s_mul_i32 s50, s50, {WPITCH}\ns_lshl_b32 s51, s45, 7\ns_add_u32 s50, s50, s51")
    a("s_lshl_b32 s51, s47, 10")
    def issue(c):
        slot=c%3
        for j in range(8):
            a(f"s_add_u32 m0, s51, {[0,32768,65536][slot]+j*4096}")
            a(f"s_add_u32 s52, s49, {c*128+j*32*XPITCH}")
            a(f"buffer_load_dwordx4 v4, s[8:11], s52 offen lds")
            if j in (1,3,5,7):
                q=j>>1
                mtx=q>>1; jj=q&1
                a(f"s_add_u32 m0, s51, {98304+slot*16384+mtx*8192+jj*4096}")
                a(f"s_add_u32 s52, s50, {c*64*WPITCH+jj*32*WPITCH}")
                a(f"buffer_load_dwordx4 v5, s[{12+4*mtx}:{15+4*mtx}], s52 offen lds")
    issue(0); issue(1); issue(2)
    for c in range(10):
        if c==0: a("s_waitcnt vmcnt(24)")
        elif c<9: a("s_waitcnt vmcnt(12)")
        else: a("s_waitcnt vmcnt(0)")
        a("s_barrier")
        if c>=1 and c+2<=9: issue(c+2)
    a("s_endpgm")
    a(f"{name}_repack_a:")
    a("s_sub_u32 s47, s43, 28\ns_lshl_b32 s47, s47, 3\ns_add_u32 s47, s47, s42")
    a(f"s_branch {name}_repack")
    a(f"{name}_repack_b:")
    a("s_sub_u32 s47, s43, 24\ns_lshl_b32 s47, s47, 1\ns_add_u32 s47, s47, s42\ns_add_u32 s47, s47, 26")
    a(f"{name}_repack:")
    a("v_lshrrev_b32 v1, 5, v0\nv_lshlrev_b32 v1, 4, v1\nv_lshrrev_b32 v2, 4, v0\nv_and_b32 v2, 1, v2\nv_lshlrev_b32 v2, 2, v2\nv_add_u32 v1, v1, v2")
    a("v_mul_u32_u24 v1, 1280, v1\nv_and_b32 v2, 15, v0\nv_lshlrev_b32 v2, 1, v2\nv_add_u32 v1, v1, v2")
    a("v_add_u32 v2, 10240, v1")
    a("v_lshlrev_b32 v3, 4, v0")
    a("s_mul_i32 s48, s47, 54\ns_add_u32 s48, s48, s3")
    for j in range(7):
        a(f"s_add_u32 s49, s48, {8*j}")
        a("s_mul_i32 s50, s49, 52429\ns_lshr_b32 s50, s50, 21")
        a("s_mul_i32 s51, s50, 40\ns_sub_u32 s51, s49, s51")
        a("s_mul_i32 s52, s50, 40960\ns_lshl_b32 s53, s51, 5\ns_add_u32 s52, s52, s53")
        a("s_mul_i32 s53, s51, 52429\ns_lshr_b32 s53, s53, 18")
        a("s_mul_i32 s54, s53, 5\ns_sub_u32 s54, s51, s54")
        a(f"s_mul_i32 s53, s53, 54\ns_add_u32 s53, s53, s50\ns_mul_i32 s53, s53, 5\ns_add_u32 s53, s53, s54\ns_lshl_b32 s{60+j}, s53, 10")
        if j==6:
            a("s_cmp_ge_u32 s3, 6")
            a("s_cselect_b32 s52, 0x7f000000, s52")
            a(f"s_cselect_b32 s{60+j}, 0x7f000000, s{60+j}")
        for e in range(8):
            a(f"buffer_load_ushort v{16+8*j+e}, v{1+(e>>2)}, s[24:27], s52 offen offset:{(e&3)*1280}")
    for j in range(7):
        a(f"s_waitcnt vmcnt({8*(6-j)+j})")
        for d in range(4):
            a(f"v_lshl_or_b32 v{80+4*j+d}, v{16+8*j+2*d+1}, 16, v{16+8*j+2*d}")
        a(f"buffer_store_dwordx4 v[{80+4*j}:{83+4*j}], v3, s[28:31], s{60+j} offen")
    a(f"{name}_exit:")
    a("s_endpgm")

def gen_k2(a, name):
    kernel_begin(a,name)
    stamp(a,0)
    if STAMP=="dbg": a("s_memtime s[84:85]")
    a("s_cmp_ge_u32 s2, 256")
    a(f"s_cbranch_scc1 {name}_exit")
    a("s_load_dwordx2 s[4:5], s[0:1], 32")
    a("s_load_dwordx2 s[40:41], s[0:1], 48")
    a("v_lshrrev_b32 v1, 6, v0")
    a("v_and_b32 v0, 63, v0")
    a("v_readfirstlane_b32 s3, v1")
    a("s_and_b32 s42, s2, 7\ns_lshr_b32 s43, s2, 3")
    a("s_lshl_b32 s44, s42, 2\ns_and_b32 s45, s43, 3\ns_add_u32 s44, s44, s45")
    a("s_lshr_b32 s45, s43, 2")
    a("s_waitcnt lgkmcnt(0)")
    srd(a,8,4,5,2621440)
    srd(a,20,40,41,H_BYTES)
    a(f"s_add_u32 s28, s40, {WDP_OFF}\ns_addc_u32 s29, s41, 0\ns_mov_b32 s30, {WDP_BYTES}\ns_mov_b32 s31, 0x20000")
    a("s_mul_i32 s46, s3, 14\ns_cmp_eq_u32 s3, 3\ns_cselect_b32 s47, 1, 0\ns_sub_u32 s46, s46, s47")
    a("s_mul_i32 s48, s44, 216\ns_add_u32 s48, s48, s46\ns_lshl_b32 s48, s48, 10")
    a("s_mul_i32 s49, s45, 54\ns_add_u32 s49, s49, s46\ns_mul_i32 s49, s49, 5120")
    a("v_lshlrev_b32 v1, 4, v0")
    for tb in range(4): a(f"v_add_u32 v{2+tb}, {tb*55296}, v1")
    a("v_add_u32 v6, 4096, v1")
    NS=14; DEP=6
    def setb(j): return 32+36*(j%DEP)
    def loads(j):
        b=setb(j); r=[]
        r.append(f"s_add_u32 s50, s48, {j*1024}\ns_add_u32 s51, s49, {j*5120}")
        if j==13:
            r[0]+="\ns_cmp_ge_u32 s3, 2\ns_cselect_b32 s50, 0x7f000000, s50\ns_cselect_b32 s51, 0x7f000000, s51"
        L=[]
        for nb in range(5):
            va="v1" if nb<4 else "v6"; off=(nb*1024) if nb<4 else 0
            L.append(f"buffer_load_dwordx4 v[{b+16+4*nb}:{b+19+4*nb}], {va}, s[28:31], s51 offen offset:{off}")
        for tb in range(4):
            L.append(f"buffer_load_dwordx4 v[{b+4*tb}:{b+3+4*tb}], v{2+tb}, s[20:23], s50 offen")
        L[0]=r[0]+"\n"+L[0]
        return L
    for j in range(DEP-1):
        for x in loads(j): a(x)
    for j in range(NS):
        later=min(NS-1-j, DEP-2)
        a(f"s_waitcnt vmcnt({9*later})")
        if j==0: stamp(a,1)
        if j==7: stamp(a,2)
        b=setb(j)
        L=loads(j+DEP-1) if j+DEP-1<NS else []
        k=0
        for nb in range(5):
            for tb in range(4):
                d=(tb*5+nb)*4
                src="0" if j==0 else f"a[{d}:{d+3}]"
                a(f"v_mfma_f32_16x16x32_bf16 a[{d}:{d+3}], v[{b+16+4*nb}:{b+19+4*nb}], v[{b+4*tb}:{b+3+4*tb}], {src}")
                if (nb*4+tb)%2==1 and k<len(L) and nb*4+tb>=1:
                    a(L[k]); k+=1
        while k<len(L): a(L[k]); k+=1
    stamp(a,3)
    a("s_nop 15")
    a("v_lshlrev_b32 v1, 4, v0")
    a("s_mul_i32 s50, s3, 20480")
    a("v_add_u32 v2, s50, v1")
    for tb in range(4):
        a(f"s_cmp_eq_u32 s3, {tb}")
        a(f"s_cbranch_scc1 {name}_skipw{tb}")
        for nb in range(5):
            d=(tb*5+nb)*4
            a(f"ds_write_b128 v2, a[{d}:{d+3}] offset:{(tb*5+nb)*1024}")
        a(f"{name}_skipw{tb}:")
    a("s_waitcnt lgkmcnt(0)")
    a("s_barrier")
    for tb in range(4):
        a(f"s_cmp_lg_u32 s3, {tb}")
        a(f"s_cbranch_scc1 {name}_skipr{tb}")
        for i in range(20):
            a(f"v_accvgpr_read_b32 v{32+i}, a{tb*20+i}")
        o=0
        others=[w for w in range(4) if w!=tb]
        for q,w in enumerate(others):
            a(f"v_add_u32 v3, {w*20480+tb*5*1024}, v1")
            for nb in range(5):
                a(f"ds_read_b128 v[{64+20*q+4*nb}:{67+20*q+4*nb}], v3 offset:{nb*1024}")
        a(f"{name}_skipr{tb}:")
    a("s_waitcnt lgkmcnt(0)")
    for q in range(3):
        for i in range(0,20,2):
            a(f"v_pk_add_f32 v[{32+i}:{33+i}], v[{32+i}:{33+i}], v[{64+20*q+i}:{65+20*q+i}]")
    a("v_and_b32 v4, 15, v0\nv_mul_u32_u24 v4, 1280, v4\nv_lshrrev_b32 v5, 4, v0\nv_lshlrev_b32 v5, 3, v5\nv_add_u32 v4, v4, v5")
    a("s_lshl_b32 s50, s44, 6\ns_lshl_b32 s51, s3, 4\ns_add_u32 s50, s50, s51\ns_mul_i32 s50, s50, 1280\ns_mul_i32 s51, s45, 160\ns_add_u32 s50, s50, s51")
    for nb in range(5):
        a(f"v_cvt_pk_bf16_f32 v{56+2*nb}, v{32+4*nb}, v{33+4*nb}")
        a(f"v_cvt_pk_bf16_f32 v{57+2*nb}, v{34+4*nb}, v{35+4*nb}")
        a(f"buffer_store_dwordx2 v[{56+2*nb}:{57+2*nb}], v4, s[8:11], s50 offen offset:{nb*32}")
    if STAMP:
        stamp(a,4)
        a("s_cmp_lg_u32 s3, 0")
        a(f"s_cbranch_scc1 {name}_exit")
        if STAMP!="dbg": stamp_out(a,6,0x10000)
        else:
            a(f"s_cmp_lg_u32 s2, {DBGWG}")
            a(f"s_cbranch_scc1 {name}_exit")
            a("s_waitcnt vmcnt(0) lgkmcnt(0)")
            a("s_memrealtime s[80:81]")
            a("s_memtime s[86:87]")
            a("s_load_dwordx2 s[66:67], s[0:1], 40")
            a(f"s_add_u32 s68, s40, {STAMP_OFF}\ns_addc_u32 s69, s41, 0")
            a("s_load_dwordx16 s[48:63], s[68:69], 0")
            a("s_waitcnt lgkmcnt(0)")
            a("v_mov_b32 v1, 0")
            for i in range(6):
                a(f"s_sub_u32 s68, s{48+2*i}, s48\nv_mov_b32 v2, s68\nglobal_store_dword v1, v2, s[66:67] offset:{4*i}")
            for i in range(6):
                a(f"s_sub_u32 s68, s{70+2*i}, s48\nv_mov_b32 v2, s68\nglobal_store_dword v1, v2, s[66:67] offset:{24+4*i}")
            a(f"s_sub_u32 s68, s86, s84\nv_mov_b32 v2, s68\nglobal_store_dword v1, v2, s[66:67] offset:48")
            if SPIN:
                a(f"{name}_spin:")
                a("s_memrealtime s[80:81]")
                a("s_waitcnt lgkmcnt(0)")
                a("s_sub_u32 s68, s80, s48")
                a(f"s_cmp_lt_u32 s68, {SPIN}")
                a(f"s_cbranch_scc1 {name}_spin")
    a(f"{name}_exit:")
    a("s_endpgm")

HEADER=open("standalone__swiglu_ffn__prompt.s.ref").read().split("; Override")[0]
def full():
    a=Asm()
    a(HEADER.rstrip())
    a("; @launch kernel=ffn1_kernel grid=(256,1,1) block=(512,1,1) lds=147456")
    a("; @launch kernel=ffn2_kernel grid=(256,1,1) block=(256,1,1) lds=81920")
    a('.amdgcn_target "amdgcn-amd-amdhsa--gfx950"')
    gen_k1(a,"ffn1_kernel")
    gen_k2(a,"ffn2_kernel")
    kernel_desc(a,"ffn1_kernel",256,256)
    kernel_desc(a,"ffn2_kernel",512,256)
    return a.text()
if __name__=="__main__":
    if len(sys.argv)>1 and sys.argv[1]=="stamp":
        STAMP=True
        t=full()
        build(t,[("ffn1_kernel",256,102,512),("ffn2_kernel",512,102,256)],"v1s")
        sys.exit(0)
    if len(sys.argv)>1 and sys.argv[1]=="dbg":
        STAMP="dbg"
        open("vdbg.s","w").write(full())
        SPIN=6000
        open("vspin60.s","w").write(full())
        SPIN=10000
        open("vspin100.s","w").write(full())
        sys.exit(0)
    t=full()
    open("v1_final.s","w").write(t)
    build(t,[("ffn1_kernel",256,102,512),("ffn2_kernel",512,102,256)],"v1")
    print("ok")
```

```python
import sys
from asmlib import *

XPITCH=1280; WPITCH=3456
H_OFF=0
WDP_OFF=0x800000
H_BYTES=128*54*1024
WDP_BYTES=8*54*5*1024
NLOG2E=0xbfb8aa3b

def srd(a, base, lo, hi, nbytes):
    a(f"s_mov_b32 s{base}, s{lo}")
    a(f"s_mov_b32 s{base+1}, s{hi}")
    a(f"s_mov_b32 s{base+2}, {nbytes}")
    a(f"s_mov_b32 s{base+3}, 0x20000")

STAMP=False
STAMP_OFF=0x1000000
def stamp(a, idx):
    if STAMP: a(f"s_memrealtime s[{70+2*idx}:{71+2*idx}]")
def stamp_out(a, n, woff, cond_wave=0):
    if not STAMP: return
    a("s_waitcnt vmcnt(0) lgkmcnt(0)")
    a(f"s_memrealtime s[{70+2*(n-1)}:{71+2*(n-1)}]")
    a("s_waitcnt lgkmcnt(0)")
    a(f"s_lshl_b32 s68, s2, 6\ns_add_u32 s68, s68, {STAMP_OFF+woff}")
    a("s_add_u32 s66, s40, s68\ns_addc_u32 s67, s41, 0")
    a("v_mov_b32 v1, 0")
    for i in range(n):
        a(f"v_mov_b32 v2, s{70+2*i}\nv_mov_b32 v3, s{71+2*i}\nglobal_store_dwordx2 v1, v[2:3], s[66:67] offset:{8*i}")
DBGWG=0
PREF=False
EARLY=False
PREF2=0
CYC=False
REPS=1
SPIN=0
def stamp_dbg(a,n):
    a("s_waitcnt vmcnt(0) lgkmcnt(0)")
    a(f"s_memrealtime s[{70+2*(n-1)}:{71+2*(n-1)}]")
    a("s_memtime s[86:87]")
    a("s_load_dwordx2 s[66:67], s[0:1], 40")
    a("s_waitcnt lgkmcnt(0)")
    a("v_mov_b32 v1, 0")
    for i in range(n):
        a(f"s_sub_u32 s68, s{70+2*i}, s70\nv_mov_b32 v2, s68\nglobal_store_dword v1, v2, s[66:67] offset:{4*i}")
    a(f"s_sub_u32 s68, s86, s84\nv_mov_b32 v2, s68\nglobal_store_dword v1, v2, s[66:67] offset:{4*n}")
    a(f"v_mov_b32 v2, s70\nglobal_store_dword v1, v2, s[66:67] offset:{4*n+4}")
def emit_pref2(a,name,tag):
    a("s_lshl_b32 s55, s2, 2\ns_add_u32 s55, s55, s3")
    a("v_lshlrev_b32 v100, 7, v0")
    a("s_cmp_lt_u32 s55, 320")
    a(f"s_cbranch_scc1 {name}_{tag}_px")
    a("s_cmp_lt_u32 s55, 590")
    a(f"s_cbranch_scc1 {name}_{tag}_pg")
    a("s_sub_u32 s55, s55, 590\ns_lshl_b32 s55, s55, 13")
    a("buffer_load_dword v101, v100, s[16:19], s55 offen")
    a(f"s_branch {name}_{tag}_pd")
    a(f"{name}_{tag}_pg:")
    a("s_sub_u32 s55, s55, 320\ns_lshl_b32 s55, s55, 13")
    a("buffer_load_dword v101, v100, s[12:15], s55 offen")
    a(f"s_branch {name}_{tag}_pd")
    a(f"{name}_{tag}_px:")
    a("s_lshl_b32 s55, s55, 13")
    a("buffer_load_dword v101, v100, s[8:11], s55 offen")
    a(f"{name}_{tag}_pd:")
def gen_k1(a, name):
    kernel_begin(a,name)
    stamp(a,0)
    if STAMP=="dbg": a("s_memtime s[84:85]")
    a("s_cmp_ge_u32 s2, 256")
    a(f"s_cbranch_scc1 {name}_exit")
    a("s_load_dwordx4 s[4:7], s[0:1], 0")
    a("s_load_dwordx4 s[36:39], s[0:1], 16")
    a("s_load_dwordx2 s[40:41], s[0:1], 48")
    a("v_lshrrev_b32 v1, 6, v0")
    a("v_and_b32 v0, 63, v0")
    a("v_readfirstlane_b32 s3, v1")
    a("s_and_b32 s42, s2, 7")
    a("s_lshr_b32 s43, s2, 3")
    a("s_and_b32 s44, s42, 1\ns_lshl_b32 s44, s44, 2\ns_and_b32 s45, s43, 3\ns_add_u32 s44, s44, s45")
    a("s_lshr_b32 s45, s42, 1\ns_mul_i32 s45, s45, 7\ns_lshr_b32 s46, s43, 2\ns_add_u32 s45, s45, s46")
    a("s_waitcnt lgkmcnt(0)")
    srd(a,8,4,5,2621440)
    srd(a,12,6,7,2211840)
    srd(a,16,36,37,2211840)
    srd(a,24,38,39,2211840)
    srd(a,20,40,41,H_BYTES)
    a(f"s_add_u32 s28, s40, {WDP_OFF}\ns_addc_u32 s29, s41, 0\ns_mov_b32 s30, {WDP_BYTES}\ns_mov_b32 s31, 0x20000")
    a("s_cmp_ge_u32 s46, 7")
    a(f"s_cbranch_scc1 {name}_repack_a")
    a("s_cmp_ge_u32 s45, 27")
    a(f"s_cbranch_scc1 {name}_repack_b")
    a("s_cmp_ge_u32 s3, 4")
    a(f"s_cbranch_scc1 {name}_loader")
    if PREF2:
        emit_pref2(a,name,"c")
    a("s_lshr_b32 s47, s3, 1")
    a("s_and_b32 s48, s3, 1")
    XS=[0,32768,65536]; WS=98304
    a("v_and_b32 v1, 31, v0")
    a("v_lshrrev_b32 v2, 5, v0")
    a("v_lshrrev_b32 v3, 1, v1\nv_and_b32 v3, 7, v3")
    a("s_lshl_b32 s49, s47, 14")
    a("v_lshlrev_b32 v13, 7, v1\nv_add_u32 v13, s49, v13")
    for s in range(4):
        a(f"v_add_u32 v14, {2*s}, v2\nv_xor_b32 v14, v14, v3\nv_lshlrev_b32 v14, 4, v14\nv_add_u32 v{4+s}, v13, v14")
        a(f"v_add_u32 v{8+s}, 0x10000, v{4+s}")
    a("v_lshrrev_b32 v14, 2, v0\nv_and_b32 v14, 3, v14")
    a("v_lshlrev_b32 v15, 3, v2\nv_add_u32 v15, v15, v14\nv_lshlrev_b32 v15, 7, v15")
    a("v_lshrrev_b32 v14, 1, v14\nv_xor_b32 v14, s48, v14\nv_lshlrev_b32 v14, 6, v14\nv_add_u32 v15, v15, v14")
    a("v_lshrrev_b32 v14, 4, v0\nv_and_b32 v14, 1, v14\nv_lshlrev_b32 v14, 5, v14\nv_add_u32 v15, v15, v14")
    a("v_and_b32 v14, 3, v0\nv_lshlrev_b32 v14, 3, v14\nv_add_u32 v15, v15, v14")
    a(f"v_add_u32 v12, {WS}, v15")
    a("v_lshrrev_b32 v14, 4, v0\nv_and_b32 v14, 1, v14\nv_mul_u32_u24 v14, 55296, v14")
    a("v_lshlrev_b32 v15, 8, v2\nv_add_u32 v14, v14, v15")
    a("v_and_b32 v15, 15, v0\nv_lshlrev_b32 v15, 4, v15\nv_add_u32 v3, v14, v15")
    a("s_lshl_b32 s50, s44, 4\ns_lshl_b32 s51, s47, 3\ns_add_u32 s50, s50, s51\ns_mul_i32 s50, s50, 54")
    a("s_lshl_b32 s51, s45, 1\ns_add_u32 s50, s50, s51\ns_add_u32 s50, s50, s48\ns_lshl_b32 s50, s50, 10")
    SET=[16,40]
    ACC=128
    def reads(c,s):
        slot=c%3; b=SET[s&1]; r=[]
        wo=slot*16384+s*2048
        xa=(4+s) if slot<2 else (8+s)
        xo=XS[slot] if slot<2 else 0
        r.append(f"ds_read_b64_tr_b16 v[{b}:{b+1}], v12 offset:{wo}")
        r.append(f"ds_read_b64_tr_b16 v[{b+2}:{b+3}], v12 offset:{wo+512}")
        r.append(f"ds_read_b128 v[{b+8}:{b+11}], v{xa} offset:{xo}")
        r.append(f"ds_read_b64_tr_b16 v[{b+4}:{b+5}], v12 offset:{wo+8192}")
        r.append(f"ds_read_b64_tr_b16 v[{b+6}:{b+7}], v12 offset:{wo+8192+512}")
        for tb in range(1,4):
            r.append(f"ds_read_b128 v[{b+8+4*tb}:{b+11+4*tb}], v{xa} offset:{xo+tb*4096}")
        return r
    def mfmas(c,s):
        b=SET[s&1]; m=[]
        first=(c==0 and s==0)
        for tb in range(4):
            for gu in range(2):
                d=ACC+(tb*2+gu)*16
                src="0" if first else f"v[{d}:{d+15}]"
                m.append(f"v_mfma_f32_32x32x16_bf16 v[{d}:{d+15}], v[{b+4*gu}:{b+4*gu+3}], v[{b+8+4*tb}:{b+11+4*tb}], {src}")
        return m
    def inter(m,r):
        ri=0
        for i,x in enumerate(m):
            a(x)
            for _ in range(2):
                if ri<len(r): a(r[ri]); ri+=1
        while ri<len(r): a(r[ri]); ri+=1
    if REPS>1:
        a(f"s_mov_b32 s60, {REPS}")
        a(f"{name}_rep:")
        a("s_mov_b64 s[72:73], s[74:75]\ns_mov_b64 s[74:75], s[76:77]")
    for c in range(10):
        a("s_barrier")
        if c==0: stamp(a,1 if REPS==1 else 3)
        if c==0 and CYC: a("s_memtime s[88:89]")
        if c==5 and REPS==1: stamp(a,2)
        if c==0:
            for x in reads(0,0): a(x)
        else:
            inter(mfmas(c-1,3),reads(c,0))
        for s in range(3):
            a("s_waitcnt lgkmcnt(0)")
            inter(mfmas(c,s),reads(c,s+1))
        a("s_waitcnt lgkmcnt(0)")
    for x in mfmas(9,3): a(x)
    if REPS>1:
        a("s_barrier")
        a("s_sub_u32 s60, s60, 1\ns_cmp_lg_u32 s60, 0")
        a(f"s_cbranch_scc1 {name}_rep")
        stamp(a,4)
        if CYC:
            a("s_memtime s[90:91]\ns_waitcnt lgkmcnt(0)\ns_sub_u32 s72, s90, s88\ns_mov_b32 s73, 0\ns_add_u32 s72, s72, s70\ns_addc_u32 s73, s71, 0")
    else:
        stamp(a,3)
    a("s_nop 15")
    a(f"s_mov_b32 s52, {NLOG2E}\ns_mov_b32 s53, {NLOG2E}")
    for tb in range(4):
        g=ACC+tb*32; u=g+16
        T=64
        for i in range(0,16,2):
            a(f"v_pk_mul_f32 v[{T+i}:{T+i+1}], v[{g+i}:{g+i+1}], s[52:53]")
        for i in range(16): a(f"v_exp_f32 v{T+i}, v{T+i}")
        for i in range(0,16,2):
            a(f"v_pk_mul_f32 v[{u+i}:{u+i+1}], v[{g+i}:{g+i+1}], v[{u+i}:{u+i+1}]")
        for i in range(0,16,2):
            a(f"v_pk_add_f32 v[{T+i}:{T+i+1}], v[{T+i}:{T+i+1}], 1.0 op_sel_hi:[1,0]")
        for i in range(16): a(f"v_rcp_f32 v{T+i}, v{T+i}")
        a("s_nop 0")
        for i in range(0,16,2):
            a(f"v_pk_mul_f32 v[{T+i}:{T+i+1}], v[{T+i}:{T+i+1}], v[{u+i}:{u+i+1}]")
        O=80+8*(tb&1)
        for i in range(8):
            a(f"v_cvt_pk_bf16_f32 v{O+i}, v{T+2*i}, v{T+2*i+1}")
        a(f"s_add_u32 s51, s50, {tb*2*55296}")
        a(f"buffer_store_dwordx4 v[{O}:{O+3}], v3, s[20:23], s51 offen")
        a(f"buffer_store_dwordx4 v[{O+4}:{O+7}], v3, s[20:23], s51 offen offset:512")
    if STAMP:
        if REPS==1: stamp(a,4)
        a("s_cmp_lg_u32 s3, 0")
        a(f"s_cbranch_scc1 {name}_exit")
        if STAMP=="dbg":
            a(f"s_cmp_lg_u32 s2, {DBGWG}")
            a(f"s_cbranch_scc1 {name}_exit")
            stamp_out(a,6,0)
        else: stamp_out(a,6,0)
    a("s_endpgm")
    a(f"{name}_loader:")
    a("s_sub_u32 s47, s3, 4")
    a("v_lshrrev_b32 v1, 3, v0\nv_and_b32 v2, 7, v0")
    a("v_lshrrev_b32 v3, 1, v1")
    a("s_and_b32 s48, s47, 1\ns_lshl_b32 s48, s48, 2")
    a("v_xor_b32 v4, v2, v3\nv_xor_b32 v4, s48, v4\nv_lshlrev_b32 v4, 4, v4")
    a(f"v_mul_u32_u24 v5, {XPITCH}, v1\nv_add_u32 v4, v4, v5")
    a("v_lshrrev_b32 v5, 2, v2\nv_and_b32 v6, 1, v3\nv_xor_b32 v5, v5, v6\nv_lshlrev_b32 v5, 6, v5")
    a("v_and_b32 v6, 3, v2\nv_lshlrev_b32 v6, 4, v6\nv_add_u32 v5, v5, v6")
    a(f"v_mul_u32_u24 v6, {WPITCH}, v1\nv_add_u32 v5, v5, v6")
    a(f"s_lshl_b32 s49, s44, 8\ns_lshl_b32 s50, s47, 3\ns_add_u32 s49, s49, s50\ns_mul_i32 s49, s49, {XPITCH}")
    a(f"s_mul_i32 s50, s50, {WPITCH}\ns_lshl_b32 s51, s45, 7\ns_add_u32 s50, s50, s51")
    a("s_lshl_b32 s51, s47, 10")
    def issue(c):
        slot=c%3
        for j in range(8):
            a(f"s_add_u32 m0, s51, {[0,32768,65536][slot]+j*4096}")
            a(f"s_add_u32 s52, s49, {c*128+j*32*XPITCH}")
            a(f"buffer_load_dwordx4 v4, s[8:11], s52 offen lds")
            if j in (1,3,5,7):
                q=j>>1
                mtx=q>>1; jj=q&1
                a(f"s_add_u32 m0, s51, {98304+slot*16384+mtx*8192+jj*4096}")
                a(f"s_add_u32 s52, s50, {c*64*WPITCH+jj*32*WPITCH}")
                a(f"buffer_load_dwordx4 v5, s[{12+4*mtx}:{15+4*mtx}], s52 offen lds")
    if REPS>1:
        a(f"s_mov_b32 s60, {REPS}")
        a(f"{name}_lrep:")
    if EARLY:
        issue(0); issue(1)
    else:
        issue(0); issue(1); issue(2)
    for c in range(10):
        if c==0 and EARLY:
            a("s_waitcnt vmcnt(12)\ns_barrier"); issue(2); continue
        if c==0: a("s_waitcnt vmcnt(24)")
        elif c<9: a("s_waitcnt vmcnt(12)")
        else: a("s_waitcnt vmcnt(0)")
        a("s_barrier")
        if c>=1 and c+2<=9: issue(c+2)
    if REPS>1:
        a("s_barrier")
        a("s_sub_u32 s60, s60, 1\ns_cmp_lg_u32 s60, 0")
        a(f"s_cbranch_scc1 {name}_lrep")
    a("s_endpgm")
    a(f"{name}_repack_a:")
    a("s_sub_u32 s47, s43, 28\ns_lshl_b32 s47, s47, 3\ns_add_u32 s47, s47, s42")
    a(f"s_branch {name}_repack")
    a(f"{name}_repack_b:")
    a("s_sub_u32 s47, s43, 24\ns_lshl_b32 s47, s47, 1\ns_add_u32 s47, s47, s42\ns_add_u32 s47, s47, 26")
    a(f"{name}_repack:")
    if PREF2:
        a("s_cmp_ge_u32 s3, 4")
        a(f"s_cbranch_scc1 {name}_rp_nopref")
        emit_pref2(a,name,"r")
        a(f"{name}_rp_nopref:")
    if PREF:
        a("s_lshl_b32 s55, s47, 3\ns_add_u32 s55, s55, s3\ns_lshl_b32 s55, s55, 13")
        a("v_lshlrev_b32 v4, 7, v0")
        a("buffer_load_dword v5, v4, s[12:15], s55 offen")
        a("buffer_load_dword v6, v4, s[16:19], s55 offen")
        a("buffer_load_dword v7, v4, s[8:11], s55 offen")
    a("v_lshrrev_b32 v1, 5, v0\nv_lshlrev_b32 v1, 4, v1\nv_lshrrev_b32 v2, 4, v0\nv_and_b32 v2, 1, v2\nv_lshlrev_b32 v2, 2, v2\nv_add_u32 v1, v1, v2")
    a("v_mul_u32_u24 v1, 1280, v1\nv_and_b32 v2, 15, v0\nv_lshlrev_b32 v2, 1, v2\nv_add_u32 v1, v1, v2")
    a("v_add_u32 v2, 10240, v1")
    a("v_lshlrev_b32 v3, 4, v0")
    a("s_mul_i32 s48, s47, 54\ns_add_u32 s48, s48, s3")
    for j in range(7):
        a(f"s_add_u32 s49, s48, {8*j}")
        a("s_mul_i32 s50, s49, 52429\ns_lshr_b32 s50, s50, 21")
        a("s_mul_i32 s51, s50, 40\ns_sub_u32 s51, s49, s51")
        a("s_mul_i32 s52, s50, 40960\ns_lshl_b32 s53, s51, 5\ns_add_u32 s52, s52, s53")
        a("s_mul_i32 s53, s51, 52429\ns_lshr_b32 s53, s53, 18")
        a("s_mul_i32 s54, s53, 5\ns_sub_u32 s54, s51, s54")
        a(f"s_mul_i32 s53, s53, 54\ns_add_u32 s53, s53, s50\ns_mul_i32 s53, s53, 5\ns_add_u32 s53, s53, s54\ns_lshl_b32 s{60+j}, s53, 10")
        if j==6:
            a("s_cmp_ge_u32 s3, 6")
            a("s_cselect_b32 s52, 0x7f000000, s52")
            a(f"s_cselect_b32 s{60+j}, 0x7f000000, s{60+j}")
        for e in range(8):
            a(f"buffer_load_ushort v{16+8*j+e}, v{1+(e>>2)}, s[24:27], s52 offen offset:{(e&3)*1280}")
    for j in range(7):
        a(f"s_waitcnt vmcnt({8*(6-j)+j})")
        for d in range(4):
            a(f"v_lshl_or_b32 v{80+4*j+d}, v{16+8*j+2*d+1}, 16, v{16+8*j+2*d}")
        a(f"buffer_store_dwordx4 v[{80+4*j}:{83+4*j}], v3, s[28:31], s{60+j} offen")
    a(f"{name}_exit:")
    a("s_endpgm")

def gen_k2(a, name):
    kernel_begin(a,name)
    stamp(a,0)
    if STAMP=="dbg": a("s_memtime s[84:85]")
    a("s_cmp_ge_u32 s2, 256")
    a(f"s_cbranch_scc1 {name}_exit")
    a("s_load_dwordx2 s[4:5], s[0:1], 32")
    a("s_load_dwordx2 s[40:41], s[0:1], 48")
    a("v_lshrrev_b32 v1, 6, v0")
    a("v_and_b32 v0, 63, v0")
    a("v_readfirstlane_b32 s3, v1")
    a("s_and_b32 s42, s2, 7\ns_lshr_b32 s43, s2, 3")
    a("s_lshl_b32 s44, s42, 2\ns_and_b32 s45, s43, 3\ns_add_u32 s44, s44, s45")
    a("s_lshr_b32 s45, s43, 2")
    a("s_waitcnt lgkmcnt(0)")
    srd(a,8,4,5,2621440)
    srd(a,20,40,41,H_BYTES)
    a(f"s_add_u32 s28, s40, {WDP_OFF}\ns_addc_u32 s29, s41, 0\ns_mov_b32 s30, {WDP_BYTES}\ns_mov_b32 s31, 0x20000")
    a("s_mul_i32 s46, s3, 14\ns_cmp_eq_u32 s3, 3\ns_cselect_b32 s47, 1, 0\ns_sub_u32 s46, s46, s47")
    a("s_mul_i32 s48, s44, 216\ns_add_u32 s48, s48, s46\ns_lshl_b32 s48, s48, 10")
    a("s_mul_i32 s49, s45, 54\ns_add_u32 s49, s49, s46\ns_mul_i32 s49, s49, 5120")
    a("v_lshlrev_b32 v1, 4, v0")
    for tb in range(4): a(f"v_add_u32 v{2+tb}, {tb*55296}, v1")
    a("v_add_u32 v6, 4096, v1")
    NS=14; DEP=6
    def setb(j): return 32+36*(j%DEP)
    def loads(j):
        b=setb(j); r=[]
        r.append(f"s_add_u32 s50, s48, {j*1024}\ns_add_u32 s51, s49, {j*5120}")
        if j==13:
            r[0]+="\ns_cmp_ge_u32 s3, 2\ns_cselect_b32 s50, 0x7f000000, s50\ns_cselect_b32 s51, 0x7f000000, s51"
        L=[]
        for nb in range(5):
            va="v1" if nb<4 else "v6"; off=(nb*1024) if nb<4 else 0
            L.append(f"buffer_load_dwordx4 v[{b+16+4*nb}:{b+19+4*nb}], {va}, s[28:31], s51 offen offset:{off}")
        for tb in range(4):
            L.append(f"buffer_load_dwordx4 v[{b+4*tb}:{b+3+4*tb}], v{2+tb}, s[20:23], s50 offen")
        L[0]=r[0]+"\n"+L[0]
        return L
    for j in range(DEP-1):
        for x in loads(j): a(x)
    for j in range(NS):
        later=min(NS-1-j, DEP-2)
        a(f"s_waitcnt vmcnt({9*later})")
        if j==0: stamp(a,1)
        if j==7: stamp(a,2)
        b=setb(j)
        L=loads(j+DEP-1) if j+DEP-1<NS else []
        k=0
        for nb in range(5):
            for tb in range(4):
                d=(tb*5+nb)*4
                src="0" if j==0 else f"a[{d}:{d+3}]"
                a(f"v_mfma_f32_16x16x32_bf16 a[{d}:{d+3}], v[{b+16+4*nb}:{b+19+4*nb}], v[{b+4*tb}:{b+3+4*tb}], {src}")
                if (nb*4+tb)%2==1 and k<len(L) and nb*4+tb>=1:
                    a(L[k]); k+=1
        while k<len(L): a(L[k]); k+=1
    stamp(a,3)
    a("s_nop 15")
    a("v_lshlrev_b32 v1, 4, v0")
    a("s_mul_i32 s50, s3, 20480")
    a("v_add_u32 v2, s50, v1")
    for tb in range(4):
        a(f"s_cmp_eq_u32 s3, {tb}")
        a(f"s_cbranch_scc1 {name}_skipw{tb}")
        for nb in range(5):
            d=(tb*5+nb)*4
            a(f"ds_write_b128 v2, a[{d}:{d+3}] offset:{(tb*5+nb)*1024}")
        a(f"{name}_skipw{tb}:")
    a("s_waitcnt lgkmcnt(0)")
    a("s_barrier")
    for tb in range(4):
        a(f"s_cmp_lg_u32 s3, {tb}")
        a(f"s_cbranch_scc1 {name}_skipr{tb}")
        for i in range(20):
            a(f"v_accvgpr_read_b32 v{32+i}, a{tb*20+i}")
        o=0
        others=[w for w in range(4) if w!=tb]
        for q,w in enumerate(others):
            a(f"v_add_u32 v3, {w*20480+tb*5*1024}, v1")
            for nb in range(5):
                a(f"ds_read_b128 v[{64+20*q+4*nb}:{67+20*q+4*nb}], v3 offset:{nb*1024}")
        a(f"{name}_skipr{tb}:")
    a("s_waitcnt lgkmcnt(0)")
    for q in range(3):
        for i in range(0,20,2):
            a(f"v_pk_add_f32 v[{32+i}:{33+i}], v[{32+i}:{33+i}], v[{64+20*q+i}:{65+20*q+i}]")
    a("v_and_b32 v4, 15, v0\nv_mul_u32_u24 v4, 1280, v4\nv_lshrrev_b32 v5, 4, v0\nv_lshlrev_b32 v5, 3, v5\nv_add_u32 v4, v4, v5")
    a("s_lshl_b32 s50, s44, 6\ns_lshl_b32 s51, s3, 4\ns_add_u32 s50, s50, s51\ns_mul_i32 s50, s50, 1280\ns_mul_i32 s51, s45, 160\ns_add_u32 s50, s50, s51")
    for nb in range(5):
        a(f"v_cvt_pk_bf16_f32 v{56+2*nb}, v{32+4*nb}, v{33+4*nb}")
        a(f"v_cvt_pk_bf16_f32 v{57+2*nb}, v{34+4*nb}, v{35+4*nb}")
        a(f"buffer_store_dwordx2 v[{56+2*nb}:{57+2*nb}], v4, s[8:11], s50 offen offset:{nb*32}")
    if STAMP:
        stamp(a,4)
        a("s_cmp_lg_u32 s3, 0")
        a(f"s_cbranch_scc1 {name}_exit")
        if STAMP!="dbg": stamp_out(a,6,0x10000)
        else:
            a(f"s_cmp_lg_u32 s2, {DBGWG}")
            a(f"s_cbranch_scc1 {name}_exit")
            a("s_waitcnt vmcnt(0) lgkmcnt(0)")
            a("s_memrealtime s[80:81]")
            a("s_memtime s[86:87]")
            a("s_load_dwordx2 s[66:67], s[0:1], 40")
            a(f"s_add_u32 s68, s40, {STAMP_OFF}\ns_addc_u32 s69, s41, 0")
            a("s_load_dwordx16 s[48:63], s[68:69], 0")
            a("s_waitcnt lgkmcnt(0)")
            a("v_mov_b32 v1, 0")
            for i in range(6):
                a(f"s_sub_u32 s68, s{48+2*i}, s48\nv_mov_b32 v2, s68\nglobal_store_dword v1, v2, s[66:67] offset:{4*i}")
            for i in range(6):
                a(f"s_sub_u32 s68, s{70+2*i}, s48\nv_mov_b32 v2, s68\nglobal_store_dword v1, v2, s[66:67] offset:{24+4*i}")
            a(f"s_sub_u32 s68, s86, s84\nv_mov_b32 v2, s68\nglobal_store_dword v1, v2, s[66:67] offset:48")
            if SPIN:
                a(f"{name}_spin:")
                a("s_memrealtime s[80:81]")
                a("s_waitcnt lgkmcnt(0)")
                a("s_sub_u32 s68, s80, s48")
                a(f"s_cmp_lt_u32 s68, {SPIN}")
                a(f"s_cbranch_scc1 {name}_spin")
    a(f"{name}_exit:")
    a("s_endpgm")

HEADER=open("standalone__swiglu_ffn__prompt.s.ref").read().split("; Override")[0]
def full():
    a=Asm()
    a(HEADER.rstrip())
    a("; @launch kernel=ffn1_kernel grid=(256,1,1) block=(512,1,1) lds=147456")
    a("; @launch kernel=ffn2_kernel grid=(256,1,1) block=(256,1,1) lds=81920")
    a('.amdgcn_target "amdgcn-amd-amdhsa--gfx950"')
    gen_k1(a,"ffn1_kernel")
    gen_k2(a,"ffn2_kernel")
    kernel_desc(a,"ffn1_kernel",256,256)
    kernel_desc(a,"ffn2_kernel",512,256)
    return a.text()
if __name__=="__main__":
    if len(sys.argv)>1 and sys.argv[1]=="stamp":
        STAMP=True
        t=full()
        build(t,[("ffn1_kernel",256,102,512),("ffn2_kernel",512,102,256)],"v1s")
        sys.exit(0)
    if len(sys.argv)>1 and sys.argv[1]=="pref":
        STAMP=True
        for PREF in [False,True]:
            for EARLY in [False,True]:
                t=full()
                build(t,[("ffn1_kernel",256,102,512),("ffn2_kernel",512,102,256)],f"v1p{int(PREF)}{int(EARLY)}")
        sys.exit(0)
    if len(sys.argv)>1 and sys.argv[1]=="pref2":
        STAMP=True; EARLY=True; PREF2=1
        t=full()
        build(t,[("ffn1_kernel",256,102,512),("ffn2_kernel",512,102,256)],f"v1q")
        sys.exit(0)
    if len(sys.argv)>1 and sys.argv[1]=="reps":
        STAMP=True; REPS=3; CYC=True
        t=full()
        build(t,[("ffn1_kernel",256,102,512),("ffn2_kernel",512,102,256)],"v1r")
        sys.exit(0)
    if len(sys.argv)>1 and sys.argv[1]=="dbg":
        STAMP="dbg"
        open("vdbg.s","w").write(full())
        SPIN=6000
        open("vspin60.s","w").write(full())
        SPIN=10000
        open("vspin100.s","w").write(full())
        sys.exit(0)
    t=full()
    open("v1_final.s","w").write(t)
    build(t,[("ffn1_kernel",256,102,512),("ffn2_kernel",512,102,256)],"v1")
    print("ok")
```
